```python
import torch

def _softmax(x, axis=-1):
    return torch.softmax(x, dim=axis)
def _gelu(x):
    return torch.nn.functional.gelu(x, approximate="tanh")
def _silu(x):
    return torch.nn.functional.silu(x)
def _sigmoid(x):
    return torch.sigmoid(x)
def _layernorm(x, axis=-1, eps=1e-5):
    m = x.mean(dim=axis, keepdim=True)
    v = x.var(dim=axis, keepdim=True, unbiased=False)
    return (x - m) / torch.sqrt(v + eps)
def _scatter_add(tgt, idx, src, axis=0):
    return tgt.clone().index_add_(axis, idx, src)
def _segment_sum(src, seg, n):
    out = torch.zeros((n,) + src.shape[1:], dtype=src.dtype)
    return out.index_add_(0, seg, src)
def _pad(x, pw):
    flat = tuple(v for pair in reversed(pw) for v in pair)
    return torch.nn.functional.pad(x, flat)

kernel_name = 'standalone__convnext_block__vision'

def setup_inputs():

    _w = (lambda a: (lambda t: t.to(torch.bfloat16) if t.is_floating_point() else t)(torch.as_tensor(a)))
    H = W = 224
    C = 96
    return {
        "x": _w((lambda *s: torch.randn(*s, dtype=torch.bfloat16) * 0.05)(1, H, W, C)),
        "dw": _w((lambda *s: torch.randn(*s, dtype=torch.bfloat16) * 0.05)(7, 7, C)),
        "w1": _w((lambda *s: torch.randn(*s, dtype=torch.bfloat16) * 0.05)(C, 4 * C)),
        "w2": _w((lambda *s: torch.randn(*s, dtype=torch.bfloat16) * 0.05)(4 * C, C)),
    }

def reference(x, dw, w1, w2):
    B, H, W, C = x.shape
    pad = 3
    xp = _pad(x, ((0,0),(pad,pad),(pad,pad),(0,0)))
    out = torch.zeros_like(x)
    for i in range(7):
        for j in range(7):
            out = out + xp[:, i:i+H, j:j+W, :] * dw[i, j][None, None, None, :]
    h = _layernorm(out, axis=-1)
    return x + _gelu(h @ w1) @ w2
```

```python
import re

TRANS = ("v_exp_f32","v_rcp_f32","v_rsq_f32","v_log_f32","v_sqrt_f32","v_sin_f32","v_cos_f32","v_exp_f16","v_rcp_f16")

def parse_regs(tok):
    tok = tok.strip()
    tok = tok.lstrip('-').strip('|')
    m = re.fullmatch(r'([vas])\[(\d+):(\d+)\]', tok)
    if m:
        return [(m.group(1), i) for i in range(int(m.group(2)), int(m.group(3))+1)]
    m = re.fullmatch(r'([vas])(\d+)', tok)
    if m:
        return [(m.group(1), int(m.group(2)))]
    if tok == 'vcc': return [('s', 106), ('s', 107)]
    if tok == 'exec': return [('s', 126), ('s', 127)]
    if tok == 'm0': return [('s', 124)]
    return []

class Ins:
    def __init__(self, text):
        self.text = text
        t = text.split(';')[0].strip()
        self.label = t.endswith(':')
        parts = t.split(None, 1)
        self.op = parts[0] if parts else ''
        rest = parts[1] if len(parts) > 1 else ''
        ops = [o.strip() for o in rest.split(',')] if rest else []
        clean = []
        for o in ops:
            clean.append(o.split()[0] if o.split() else o)
        self.ops = clean
        self.rest = rest
        op = self.op
        self.kind = 'other'
        self.w = []; self.r = []
        if op.startswith('v_mfma'):
            self.kind = 'mfma'
            self.passes = 8 if '32x32x16' in op else 4
            self.w = parse_regs(clean[0]); self.a = parse_regs(clean[1]); self.b = parse_regs(clean[2]); self.c = parse_regs(clean[3])
            self.r = self.a + self.b + self.c
        elif op.startswith('ds_read') or op.startswith('ds_bpermute') or op.startswith('ds_permute') or op.startswith('ds_swizzle'):
            self.kind = 'ds'; self.w = parse_regs(clean[0]); self.r = sum((parse_regs(o) for o in clean[1:]), [])
        elif op.startswith('ds_'):
            self.kind = 'ds'; self.r = sum((parse_regs(o) for o in clean), [])
        elif op.startswith('buffer_load') or op.startswith('global_load'):
            self.kind = 'vmem'
            if ' lds' in (' '+rest):
                self.r = sum((parse_regs(o) for o in clean), []) + [('s',124)]
            else:
                self.w = parse_regs(clean[0]); self.r = sum((parse_regs(o) for o in clean[1:]), [])
        elif op.startswith('buffer_store') or op.startswith('global_store'):
            self.kind = 'vmem'; self.store = True; self.r = sum((parse_regs(o) for o in clean), [])
            self.data = parse_regs(clean[0]) if op.startswith('buffer') else parse_regs(clean[1])
        elif op.startswith('v_'):
            self.kind = 'valu'
            if op.startswith('v_permlane') and 'swap' in op:
                self.w = parse_regs(clean[0]) + parse_regs(clean[1]); self.r = list(self.w)
            elif op.startswith('v_cmp'):
                self.w = parse_regs(clean[0]); self.r = sum((parse_regs(o) for o in clean[1:]), [])
            elif op == 'v_nop':
                pass
            else:
                self.w = parse_regs(clean[0]); self.r = sum((parse_regs(o) for o in clean[1:]), [])
                if op.startswith('v_cndmask') and len(clean) == 3: self.r += parse_regs('vcc')
                if op.startswith('v_fmac') or op.startswith('v_dot2c') or op.startswith('v_mac'): self.r += self.w
                if '_co_' in op:
                    self.w += parse_regs(clean[1])
        elif op.startswith('s_'):
            self.kind = 'salu'
            if op in ('s_nop','s_waitcnt','s_barrier','s_endpgm','s_branch','s_setprio','s_sleep') or op.startswith('s_cbranch') or op.startswith('s_cmp'):
                self.r = sum((parse_regs(o) for o in clean), []) if op.startswith('s_cmp') else []
            else:
                self.w = parse_regs(clean[0]) if clean else []
                self.r = sum((parse_regs(o) for o in clean[1:]), [])
                if 'saveexec' in op: self.w += parse_regs('exec')
        self.ws = 1
        if op == 's_nop': self.ws = int(clean[0]) + 1
        if self.label or op == '' or op.startswith('.') : self.ws = 0

def check_hazards(lines, name=""):
    ins = [Ins(l) for l in lines]
    ins = [i for i in ins if i.ws > 0]
    probs = []
    n = len(ins)
    pos = [0]*(n+1)
    for k in range(n): pos[k+1] = pos[k] + ins[k].ws
    def dist(i, j):
        return pos[j] - pos[i+1]
    for j in range(n):
        c = ins[j]
        lo = max(0, j-24)
        for i in range(j-1, lo-1, -1):
            p = ins[i]
            d = dist(i, j)
            if d >= 20: break
            pw = set(p.w); cr = set(c.r); cw = set(c.w)
            def need(k, why):
                if d < k: probs.append(f"{name}: need {k} ws have {d}: [{p.text.strip()}] -> [{c.text.strip()}] ({why})")
            if p.kind == 'valu':
                vw = {x for x in pw if x[0] in 'va'}; sw = {x for x in pw if x[0] == 's'}
                if c.kind == 'mfma' and vw & cr: need(2, "valu->mfma")
                if c.kind == 'valu':
                    if p.op in TRANS and c.op not in TRANS and vw & cr: need(1, "trans->valu")
                    if c.op.startswith('v_permlane') and vw & cr: need(2, "valu->permlane")
                    if (c.op.startswith('v_readfirstlane') or c.op.startswith('v_readlane')) and vw & cr: need(1, "valu->readlane")
                    if ('dpp' in c.rest or 'row_' in c.rest or 'quad_perm' in c.rest) and vw & cr: need(2, "valu->dpp")
                    if sw & cr: need(2, "valu sgpr->valu read")
                    if 'sdwa' in p.op or 'op_sel' in p.rest and not p.op.startswith('v_pk'):
                        if vw & (cr|cw): need(1, "opsel")
                if c.kind == 'vmem' and sw & cr: need(5, "valu sgpr->vmem")
                if p.op in TRANS and c.kind in ('mfma',) and vw & cr: need(2, "trans->mfma")
                if p.op.startswith('v_dot') and c.kind in ('valu','mfma','ds','vmem') and vw & (cr|cw) and not (c.op == p.op and not (vw & set(sum((parse_regs(o) for o in c.ops[1:3]), [])))):
                    need(3, "dot->use")
            if p.kind == 'mfma':
                big = 12 if p.passes == 8 else 8
                if c.kind == 'mfma':
                    if pw & (set(c.a) | set(c.b)): need(big, "mfma D->A/B")
                    if pw & set(c.c) and (c.c != p.w or c.passes != p.passes): need(10 if p.passes == 8 else 6, "mfma D->C overlap")
                    if pw & cw and not (pw & set(c.c)) : need(big, "mfma D WAW (conservative)")
                elif c.kind in ('valu', 'ds', 'vmem'):
                    if pw & (cr | cw): need(big, "mfma D->use")
                if c.kind == 'valu' and set(p.c) & cw: need(7 if p.passes == 8 else 3, "mfma C WAR")
            if p.kind == 'vmem' and getattr(p, 'store', False) and len(p.data) >= 3:
                if set(p.data) & cw: need(2 if c.kind == 'valu' else 1, "store data WAR")
            if p.kind == 'salu' and ('s',124) in pw and c.kind == 'vmem' and ('s',124) in cr: need(1, "m0->lds dma")
            if p.kind == 'valu' and (('s',126) in pw) and c.kind == 'mfma': need(4, "valu exec->mfma")
    return probs
```

```python
import math, struct, sys
from asmlib import check_hazards

ARGS = sys.argv[1:]
DEBUG_STAMPS = 'stamp' in ARGS
DUMP = [x for x in ARGS if x.startswith('dump')]
OUTF = [x[4:] for x in ARGS if x.startswith('out=')]
OUTF = OUTF[0] if OUTF else 'standalone__convnext_block__vision.s'

def f2u(x): return struct.unpack('<I', struct.pack('<f', x))[0]
C1 = 2*math.sqrt(2/math.pi)*math.log2(math.e)
C3 = C1*0.044715
SC = C3**(1/3)
KK = C1/SC

XB = 0
TB = 92352; TS = 568
DB = 146880
HB = 0; HS = 208
WB = 46592; WWIN = 18432
LDS_TOTAL = 163264
OOB = 0x40000000

L = []
def e(s): L.append("    " + s)
def lab(s): L.append(s + ":")
def cm(s): L.append("    ; " + s)
def nop(n): e(f"s_nop {n-1}")
def v(i, n=1): return f"v{i}" if n == 1 else f"v[{i}:{i+n-1}]"
def a(i, n=1): return f"a{i}" if n == 1 else f"a[{i}:{i+n-1}]"
def s(i, n=1): return f"s{i}" if n == 1 else f"s[{i}:{i+n-1}]"

SX, SDW, SW1, SW2, SO, SDBG, SWS = 4, 8, 12, 16, 20, 24, 64
sW, sY0, sX0 = 28, 29, 30
sK, sONE, sINV = 40, 42, 44
sSELL, sSELH = 46, 47
sROW = 48
sCNT = 53
sEX60, sEX49, sEX48, sEX24 = 54, 56, 58, 60
sDBW = 62
sMASKHI = 63
sSTAMP = 70
nstamp = [0]
def stamp():
    if DEBUG_STAMPS:
        e(f"s_memtime {s(sSTAMP+2*nstamp[0],2)}")
        nstamp[0] += 1

vL = 1
vXOFF = 16
vXW, vPADW, vDWG, vDWL, vTS1, vTS2, vTD, vW1G, vW2G, vLIN = 20,21,22,23,24,25,26,27,28,29
vAA = 30
vBA = 38
vHW = 39
vGO = 43
vSW = 47
XS = 48
D0 = 48
AB = 144
PT = 144
DWS = 160
TRT = 172
ST = 224
vTR1, vTR2, vHR, vGT, vRW, vRR = 16, 17, 20, 21, 22, 25
vGA, vGB, vGC, vCH8, vCH4S, vCH2S, vWL = 26, 27, 28, 30, 31, 32, 33
vTA, vTBb = 34, 35
Z = [48, 64, 80]; TT = [96, 112, 128]; Y = 144; ACC0 = 152; RECV = 168; E = 204; XR = 216; OP4 = 224; OP2 = 228
aW1, aW2, aH, aC1, aC2 = 0, 72, 144, 168, 184

def header():
    return f"""; ConvNeXt block (depthwise 7x7 -> LayerNorm -> MLP(GELU) -> residual), gfx950
; @launch grid=(256,1,1) block=(256,1,1) lds={LDS_TOTAL}
.amdgcn_target "amdgcn-amd-amdhsa--gfx950"
.text
.globl standalone__convnext_block__vision_kernel
.p2align 8
.type standalone__convnext_block__vision_kernel,@function
standalone__convnext_block__vision_kernel:
"""
def footer():
    return """L_end:
    s_endpgm
.section .rodata,"a"
.p2align 6
.amdhsa_kernel standalone__convnext_block__vision_kernel
  .amdhsa_next_free_vgpr 512
  .amdhsa_next_free_sgpr 102
  .amdhsa_accum_offset 256
  .amdhsa_group_segment_fixed_size 0
  .amdhsa_kernarg_size 56
  .amdhsa_user_sgpr_count 2
  .amdhsa_user_sgpr_kernarg_segment_ptr 1
  .amdhsa_system_sgpr_workgroup_id_x 1
.end_amdhsa_kernel
"""
def srd(base, nbytes):
    e(f"s_mov_b32 {s(base+2)}, {nbytes}")
    e(f"s_mov_b32 {s(base+3)}, 0x00020000")

def dump_regs(first, n, slot):
    e(f"s_lshl_b32 s36, s2, 8")
    e(f"v_add_u32 v2, s36, v0")
    e(f"v_mul_u32_u24 v2, {n*4}, v2")
    e(f"s_mov_b32 s36, {slot*0x4000000}")
    for i in range(0, n, 4):
        e(f"buffer_store_dwordx4 {v(first+i,4)}, v2, {s(SWS,4)}, s36 offen offset:{4*i}")
    e("s_waitcnt vmcnt(0)")
def dump_lds(base, nbytes, slot):
    e("s_barrier")
    e(f"s_mul_i32 s36, s2, {nbytes}")
    e(f"s_add_u32 s36, s36, {slot*0x4000000}")
    e(f"v_lshlrev_b32 v2, 4, v0")
    for o in range(0, nbytes, 4096):
        e(f"v_add_u32 v3, {base+o}, v2")
        e(f"ds_read_b128 v[4:7], v3")
        e(f"v_add_u32 v3, {o}, v2")
        e(f"v_cmp_gt_u32 vcc, {nbytes}, v3")
        e(f"v_mov_b32 v8, {OOB}")
        nop(1)
        e(f"v_cndmask_b32 v3, v8, v3, vcc")
        e("s_waitcnt lgkmcnt(0)")
        e(f"buffer_store_dwordx4 v[4:7], v3, {s(SWS,4)}, s36 offen")
        e("s_waitcnt vmcnt(0)")
    e("s_barrier")

e("s_cmp_ge_u32 s2, 256")
e("s_cbranch_scc1 L_end")
stamp()
e(f"s_load_dwordx2 {s(SX,2)}, s[0:1], 0")
e(f"s_load_dwordx2 {s(SDW,2)}, s[0:1], 8")
e(f"s_load_dwordx2 {s(SW1,2)}, s[0:1], 16")
e(f"s_load_dwordx2 {s(SW2,2)}, s[0:1], 24")
e(f"s_load_dwordx2 {s(SO,2)}, s[0:1], 32")
if DEBUG_STAMPS: e(f"s_load_dwordx2 {s(SDBG,2)}, s[0:1], 40")
if DUMP: e(f"s_load_dwordx2 {s(SWS,2)}, s[0:1], 48")
e(f"v_lshrrev_b32 v2, 6, v0")
e(f"v_and_b32 {v(vL)}, 63, v0")
e(f"v_readfirstlane_b32 {s(sW)}, v2")
e(f"s_and_b32 s32, s2, 7")
e(f"s_lshr_b32 s33, s2, 3")
e(f"s_lshr_b32 s34, s32, 1")
e(f"s_lshl_b32 s34, s34, 2")
e(f"s_lshr_b32 s35, s33, 3")
e(f"s_add_u32 s34, s34, s35")
e(f"s_and_b32 s32, s32, 1")
e(f"s_lshl_b32 s32, s32, 3")
e(f"s_and_b32 s33, s33, 7")
e(f"s_add_u32 s32, s32, s33")
e(f"s_mul_i32 {s(sY0)}, s34, 14")
e(f"s_mul_i32 {s(sX0)}, s32, 14")
srd(SX, 9633792); srd(SDW, 9408); srd(SW1, 73728); srd(SW2, 73728); srd(SO, 9633792)
if DEBUG_STAMPS: srd(SDBG, 256)
if DUMP: srd(SWS, 268435456)
e(f"v_mul_u32_u24 v2, 43, {v(vL)}")
e(f"v_lshrrev_b32 v2, 9, v2")
e(f"v_mul_u32_u24 v3, 12, v2")
e(f"v_sub_u32 v3, {v(vL)}, v3")
e(f"s_sub_u32 s32, {s(sX0)}, 3")
e(f"v_lshlrev_b32 v4, 2, v2")
e(f"v_add_u32 v4, s32, v4")
e(f"v_lshlrev_b32 v5, 4, v3")
e(f"v_mov_b32 v7, {OOB}")
e(f"v_cmp_gt_u32 vcc, 60, {v(vL)}")
e(f"s_movk_i32 s33, 224")
e(f"s_movk_i32 s34, 192")
e(f"v_cndmask_b32 v4, v7, v4, vcc")
for j in range(4):
    e(f"v_add_u32 v6, {j}, v4")
    e(f"v_cmp_gt_u32 vcc, s33, v6")
    e(f"v_mad_u32_u24 v8, v6, s34, v5")
    nop(1)
    e(f"v_cndmask_b32 {v(vXOFF+j)}, v7, v8, vcc")
e(f"s_mul_i32 s35, {s(sW)}, 5")
e(f"s_add_u32 s35, s35, {s(sY0)}")
e(f"s_sub_u32 s35, s35, 3")
for t in range(5):
    e(f"s_add_u32 s36, s35, {t}")
    e(f"s_mul_i32 s37, s36, 43008")
    e(f"s_cmp_lt_u32 s36, 224")
    e(f"s_cselect_b32 {s(sROW+t)}, s37, {OOB}")
e(f"s_mul_i32 s36, {s(sW)}, 48")
e(f"v_mul_u32_u24 {v(vDWG)}, 192, {v(vL)}")
e(f"v_add_u32 {v(vDWG)}, s36, {v(vDWG)}")
e("s_waitcnt lgkmcnt(0)")
for i in range(3):
    e(f"buffer_load_dwordx4 {v(DWS+4*i,4)}, {v(vDWG)}, {s(SDW,4)}, 0 offen offset:{16*i}")
for t in range(5):
    for j in range(4):
        e(f"buffer_load_dwordx4 {v(XS+16*t+4*j,4)}, {v(vXOFF+j)}, {s(SX,4)}, {s(sROW+t)} offen")
e(f"v_lshrrev_b32 v6, 2, {v(vL)}")
e(f"v_mul_u32_u24 v6, 768, v6")
e(f"v_and_b32 v8, 3, {v(vL)}")
e(f"v_lshlrev_b32 v8, 4, v8")
e(f"s_mul_i32 s36, {s(sW)}, 192")
e(f"v_add3_u32 {v(vW1G)}, v6, v8, s36")
e(f"s_mul_i32 s36, {s(sW)}, 18432")
e(f"v_lshlrev_b32 {v(vLIN)}, 4, {v(vL)}")
e(f"v_add_u32 {v(vW2G)}, s36, {v(vLIN)}")
for j in range(3):
    for i in range(6):
        e(f"s_mov_b32 s36, {12288*i}")
        e(f"buffer_load_dwordx4 {a(aW1+24*j+4*i,4)}, {v(vW1G)}, {s(SW1,4)}, s36 offen offset:{64*j}")
for i in range(18):
    if i % 4 == 0: e(f"s_mov_b32 s36, {1024*i}")
    e(f"buffer_load_dwordx4 {a(aW2+4*i,4)}, {v(vW2G)}, {s(SW2,4)}, s36 offen offset:{1024*(i%4)}")
stamp()
NW = 36
e(f"s_mov_b32 {s(sEX60)}, -1");  e(f"s_mov_b32 {s(sEX60+1)}, 0x0fffffff")
e(f"s_mov_b32 {s(sEX49)}, -1");  e(f"s_mov_b32 {s(sEX49+1)}, 0x0001ffff")
e(f"s_mov_b32 {s(sEX48)}, -1");  e(f"s_mov_b32 {s(sEX48+1)}, 0x0000ffff")
e(f"s_mov_b32 {s(sEX24)}, 0x00ffffff");  e(f"s_mov_b32 {s(sEX24+1)}, 0")
e(f"s_mov_b32 {s(sSELL)}, 0x05040100")
e(f"s_mov_b32 {s(sSELH)}, 0x07060302")
e(f"s_mul_i32 s36, {s(sW)}, 240")
e(f"v_mul_u32_u24 v6, 7696, v3")
e(f"v_add_u32 v6, s36, v6")
e(f"v_lshl_add_u32 {v(vXW)}, v2, 3, v6")
e(f"v_mul_u32_u24 v8, 48, v2")
e(f"v_add3_u32 {v(vPADW)}, v6, v8, 40")
e(f"s_lshl_b32 {s(sDBW)}, {s(sW)}, 12")
e(f"s_add_u32 {s(sDBW)}, {s(sDBW)}, {DB}")
e(f"v_add_u32 {v(vSW)}, {s(sDBW)}, {v(vLIN)}")
for i in range(4): e(f"v_mov_b32 {v(12+i)}, 0")
for i in range(4):
    e(f"ds_write_b128 {v(vSW)}, {v(12,4)} offset:{1024*i}")
e(f"s_mov_b64 exec, {s(sEX60,2)}")
for ee in range(8):
    e(f"ds_write_b64 {v(vPADW)}, {v(12,2)} offset:{960*ee}")
e(f"s_mov_b64 exec, -1")
e(f"v_mul_u32_u24 v6, 37, {v(vL)}")
e(f"v_lshrrev_b32 v6, 8, v6")
e(f"v_mul_u32_u24 v6, 3, v6")
e(f"v_add3_u32 v6, v6, {v(vL)}, 3")
e(f"v_mul_u32_u24 v6, 48, v6")
e(f"v_add_u32 {v(vDWL)}, {s(sDBW)}, v6")
e(f"v_lshrrev_b32 v6, 4, {v(vL)}")
e(f"v_bfe_u32 v7, {v(vL)}, 1, 1")
e(f"v_lshl_add_u32 v6, v6, 1, v7")
e(f"v_bfe_u32 v7, {v(vL)}, 2, 2")
e(f"v_and_b32 v8, 1, {v(vL)}")
e(f"v_lshlrev_b32 v8, 3, v8")
e(f"v_add_u32 v8, {s(sDBW)}, v8")
e(f"v_and_b32 v9, 4, v6")
e(f"v_and_b32 v10, 3, v6")
e(f"v_sub_u32 v9, v9, v10")
e(f"v_add3_u32 v9, v9, v7, 3")
e(f"v_mul_u32_u24 v9, 48, v9")
e(f"v_add_u32 {v(vTS1)}, v9, v8")
e(f"v_lshrrev_b32 v9, 1, v6")
e(f"v_mul_u32_u24 v9, 10, v9")
e(f"v_and_b32 v10, 1, v6")
e(f"v_sub_u32 v9, v9, v10")
e(f"v_add3_u32 v9, v9, v7, 9")
e(f"v_mul_u32_u24 v9, 48, v9")
e(f"v_add_u32 {v(vTS2)}, v9, v8")
e(f"s_mul_i32 s36, {s(sW)}, {24*TS}")
e(f"s_add_u32 s36, s36, {TB}")
e(f"v_and_b32 v6, 7, {v(vL)}")
e(f"v_mul_u32_u24 v6, {TS}, v6")
e(f"v_lshrrev_b32 v7, 3, {v(vL)}")
e(f"v_lshlrev_b32 v7, 3, v7")
e(f"v_add3_u32 {v(vTD)}, v6, v7, s36")
e(f"v_mul_u32_u24 v6, {TS}, {v(vL)}")
e(f"v_add_u32 v6, s36, v6")
e(f"s_mov_b64 exec, {s(sEX24,2)}")
e(f"ds_write_b64 v6, {v(12,2)} offset:448")
e(f"s_mov_b64 exec, -1")
e(f"v_bfe_u32 v2, {v(vL)}, 3, 1")
e(f"v_bfe_u32 v3, {v(vL)}, 2, 1")
e(f"v_and_b32 v4, 3, {v(vL)}")
e(f"v_bfe_u32 v5, {v(vL)}, 4, 1")
e(f"v_lshrrev_b32 v6, 5, {v(vL)}")
e(f"v_lshlrev_b32 v7, 1, v5")
e(f"v_sub_u32 v7, v7, v2")
e(f"v_lshlrev_b32 v8, 1, v6")
e(f"v_sub_u32 v8, v8, v3")
MUL = [ST+0, ST+1]; OFF = [ST+2, ST+3]
for G in range(2):
    e(f"v_add_u32 v9, {G}, v8")
    e(f"v_lshl_add_u32 v10, v9, 2, v4")
    e(f"v_lshlrev_b32 v10, 3, v10")
    e(f"v_mov_b32 {v(MUL[G])}, 0")
    e(f"v_mov_b32 {v(OFF[G])}, 448")
    e(f"v_cmp_gt_u32 vcc, 2, v9")
    e(f"v_mov_b32 v11, 64")
    nop(1)
    e(f"v_cndmask_b32 {v(MUL[G])}, {v(MUL[G])}, v11, vcc")
    e(f"v_cndmask_b32 {v(OFF[G])}, {v(OFF[G])}, v10, vcc")
    e(f"v_lshrrev_b32 v11, 4, v10")
    e(f"v_cmp_eq_u32 vcc, 5, v11")
    e(f"v_lshlrev_b32 v10, 3, v4")
    e(f"v_add_u32 v10, 440, v10")
    e(f"v_mov_b32 v11, 16")
    e(f"v_cndmask_b32 {v(OFF[G])}, {v(OFF[G])}, v10, vcc")
    e(f"v_cndmask_b32 {v(MUL[G])}, {v(MUL[G])}, v11, vcc")
e(f"v_mov_b32 v11, 448")
for sidx in range(4):
    cs = (sidx & 1) + 4*(sidx >> 1)
    e(f"v_add_u32 v9, {cs}, v7")
    e(f"v_cmp_gt_u32 vcc, 7, v9")
    for G in range(2):
        e(f"v_mad_u32_u24 v{12+G}, v9, {v(MUL[G])}, {v(OFF[G])}")
    for G in range(2):
        e(f"v_cndmask_b32 v{12+G}, v11, v{12+G}, vcc")
        e(f"v_add_u32 {v(vAA+2*sidx+G)}, s36, v{12+G}")
e(f"v_bfe_u32 v9, {v(vL)}, 1, 3")
e(f"v_min_u32 v9, 6, v9")
e(f"v_and_b32 v10, 1, {v(vL)}")
e(f"v_add_u32 v11, v9, v5")
e(f"v_mul_u32_u24 v11, 96, v11")
e(f"v_add_u32 v12, v10, v6")
e(f"v_lshl_add_u32 v11, v12, 4, v11")
e(f"s_mul_i32 s37, {s(sW)}, {24*960+48}")
e(f"v_add_u32 {v(vBA)}, s37, v11")
e(f"v_and_b32 v2, 15, {v(vL)}")
e(f"v_mul_u32_u24 v3, 6, v6")
e(f"v_lshl_add_u32 v3, v5, 2, v3")
e(f"v_mul_u32_u24 v3, 14, v3")
e(f"v_add_u32 v3, v3, v2")
e(f"v_mul_u32_u24 v4, 14, v6")
e(f"v_add_u32 v4, v4, v9")
e(f"v_add_u32 v4, 168, v4")
e(f"v_mov_b32 v7, 200")
e(f"s_mul_i32 s37, {s(sW)}, 48")
e(f"s_add_u32 s37, s37, {HB}")
e(f"s_movk_i32 s38, {HS}")
e(f"v_cmp_eq_u32 vcc, 0, v10")
nop(2)
e(f"v_cndmask_b32 v8, v7, v4, vcc")
e(f"v_add_u32 v4, 7, v4")
e(f"v_cndmask_b32 v4, v7, v4, vcc")
e(f"v_cmp_eq_u32 {s(32,2)}, 1, v5")
e(f"v_cmp_gt_u32 vcc, 14, v2")
nop(1)
for r in range(4):
    e(f"v_add_u32 v11, {14*r}, v3")
    if r == 2: e(f"v_cndmask_b32 v11, v11, v8, {s(32,2)}")
    if r == 3: e(f"v_cndmask_b32 v11, v11, v4, {s(32,2)}")
    e(f"v_cndmask_b32 v11, v7, v11, vcc")
    e(f"v_mad_u32_u24 {v(vHW+r)}, v11, s38, v11" if False else f"v_mul_u32_u24 v11, {HS}, v11")
    e(f"v_add_u32 {v(vHW+r)}, s37, v11")
e(f"v_lshl_add_u32 v11, v9, 1, v6")
e(f"v_add_u32 v11, {s(sY0)}, v11")
e(f"v_mul_u32_u24 v11, 224, v11")
e(f"v_lshlrev_b32 v12, 3, v10")
e(f"v_lshl_add_u32 v12, v5, 2, v12")
e(f"v_add3_u32 v11, v11, v12, {s(sX0)}")
e(f"v_mul_u32_u24 {v(vGO)}, 192, v11")
for r in range(1, 4):
    e(f"v_add_u32 {v(vGO+r)}, {192*r}, {v(vGO)}")
e(f"s_waitcnt vmcnt({20+NW})")
e(f"s_mov_b64 exec, {s(sEX49,2)}")
for i in range(3):
    e(f"ds_write_b128 {v(vDWL)}, {v(DWS+4*i,4)} offset:{16*i}")
e(f"s_mov_b64 exec, -1")
items = [(vTS1, 480*i+16*o, 8*TS*o+64*i, False) for i in range(7) for o in range(3)]
items += [(vTS2, 1920*ih+16*o, 8*57+64*ih+8*TS*o, ih == 1) for ih in range(2) for o in range(3)]
for c0 in range(0, 27, 14):
    grp = items[c0:c0+14]
    for k, (src, so, do, m) in enumerate(grp):
        e(f"ds_read_b64_tr_b16 {v(TRT+2*k,2)}, {v(src)} offset:{so}")
    for k, (src, so, do, m) in enumerate(grp):
        e(f"s_waitcnt lgkmcnt({min(15,len(grp)-1)})")
        if m: e(f"s_mov_b64 exec, {s(sEX48,2)}")
        e(f"ds_write_b64 {v(vTD)}, {v(TRT+2*k,2)} offset:{do}")
        if m: e(f"s_mov_b64 exec, -1")
stamp()
e(f"s_mov_b64 exec, {s(sEX60,2)}")
for t in range(5):
    e(f"s_waitcnt vmcnt({NW + 4*(4-t)})")
    if t == 0: stamp()
    base = XS + 16*t
    for d in range(4):
        for hl in range(2):
            ee = 2*d + hl
            sel = s(sSELH) if hl else s(sSELL)
            e(f"v_perm_b32 {v(PT+2*ee)}, {v(base+4+d)}, {v(base+d)}, {sel}")
            e(f"v_perm_b32 {v(PT+2*ee+1)}, {v(base+12+d)}, {v(base+8+d)}, {sel}")
            e(f"ds_write_b64 {v(vXW)}, {v(PT+2*ee,2)} offset:{960*ee+48*t}")
e(f"s_mov_b64 exec, -1")
e("s_waitcnt lgkmcnt(0)")
stamp()
e("s_barrier")
stamp()
if 'dumpX' in DUMP: dump_lds(0, 146880, 0)
def conv_reads(cl):
    buf = AB + 32*(cl % 2)
    out = []
    for sidx in range(4):
        out.append([
            f"ds_read_b128 {v(buf+16+4*sidx,4)}, {v(vBA)} offset:{960*cl+16*(cl>>3)+48*(sidx&1)+192*(sidx>>1)}",
            f"ds_read_b64 {v(buf+4*sidx,2)}, {v(vAA+2*sidx)} offset:{TS*cl}",
            f"ds_read_b64 {v(buf+4*sidx+2,2)}, {v(vAA+2*sidx+1)} offset:{TS*cl}"])
    return out
for i in range(8): e(f"v_mov_b32 {v(ST+i)}, 0")
for grp in conv_reads(0):
    for x in grp: e(x)
def stats(cl, r):
    d = D0 + 4*cl + r
    return [f"v_add_f32 {v(ST+r)}, {v(ST+r)}, {v(d)}", f"v_fmac_f32 {v(ST+4+r)}, {v(d)}, {v(d)}"]
for cl in range(24):
    buf = AB + 32*(cl % 2)
    nxt = conv_reads(cl+1) if cl < 23 else None
    for sidx in range(4):
        e(f"s_waitcnt lgkmcnt({9 if nxt else 9-3*sidx})")
        d = v(D0+4*cl, 4)
        e(f"v_mfma_f32_16x16x32_bf16 {d}, {v(buf+4*sidx,4)}, {v(buf+16+4*sidx,4)}, {'0' if sidx == 0 else d}")
        if nxt:
            for x in nxt[sidx]: e(x)
        if cl >= 2:
            for x in stats(cl-2, sidx): e(x)
for cl in (22, 23):
    if cl == 23: nop(8)
    for r in range(4):
        for x in stats(cl, r): e(x)
stamp()
if 'dumpD' in DUMP: dump_regs(D0, 96, 1)
e(f"ds_write_b128 {v(vSW)}, {v(ST,4)}")
e(f"ds_write_b128 {v(vSW)}, {v(ST+4,4)} offset:1024")
e(f"s_mul_i32 s36, {s(sW)}, {WWIN}")
e(f"s_add_u32 s36, s36, {WB}")
e(f"v_add_u32 {v(vWL)}, s36, {v(vLIN)}")
e(f"v_lshrrev_b32 v2, 5, {v(vL)}")
e(f"v_bfe_u32 v3, {v(vL)}, 4, 1")
e(f"v_bfe_u32 v4, {v(vL)}, 2, 2")
e(f"v_and_b32 v5, 3, {v(vL)}")
e(f"v_lshl_add_u32 v6, v2, 3, v4")
e(f"v_lshlrev_b32 v6, 6, v6")
e(f"v_lshl_add_u32 v6, v3, 5, v6")
e(f"v_lshl_add_u32 v6, v5, 3, v6")
e("s_waitcnt lgkmcnt(0)")
e("s_barrier")
stamp()
SR = 192
e(f"v_add_u32 v7, {DB}, {v(vLIN)}")
for w in range(4):
    e(f"ds_read_b128 {v(SR+8*w,4)}, v7 offset:{4096*w}")
    e(f"ds_read_b128 {v(SR+8*w+4,4)}, v7 offset:{4096*w+1024}")
e(f"v_add_u32 {v(vTR1)}, s36, v6")
e(f"v_lshl_add_u32 v6, v2, 2, v4")
e(f"v_mul_u32_u24 v6, 192, v6")
e(f"v_add_u32 v6, s36, v6")
e(f"s_mul_i32 s37, {s(sW)}, 24")
e(f"v_lshlrev_b32 v8, 4, v3")
e(f"v_lshl_add_u32 v8, v5, 2, v8")
e(f"v_add_u32 v8, s37, v8")
for cb in range(3):
    e(f"v_add_u32 v9, {32*cb}, v8")
    e(f"v_subrev_u32 v10, 96, v9")
    e(f"v_min_u32 v9, v9, v10")
    e(f"v_lshl_add_u32 {v(vTR2+cb)}, v9, 1, v6")
e(f"s_waitcnt vmcnt(18)")
stamp()
for i in range(18):
    e(f"ds_write_b128 {v(vWL)}, {a(aW1+4*i,4)} offset:{1024*i}")
e(f"s_waitcnt lgkmcnt(15)")
e(f"s_waitcnt lgkmcnt(15)")
def pk(op, d, *srcs, mod=""):
    e(f"v_pk_{op}_f32 {v(d,2)}, " + ", ".join(srcs) + mod)
e("s_waitcnt lgkmcnt(0)")
for k in range(0, 8, 2):
    pk("add", ST+k, v(SR+k,2), v(SR+8+k,2))
    pk("add", SR+16+k, v(SR+16+k,2), v(SR+24+k,2))
for k in range(0, 8, 2):
    pk("add", ST+k, v(ST+k,2), v(SR+16+k,2))
for j in range(3):
    for ks in range(6):
        for q in range(2):
            e(f"ds_read_b64_tr_b16 {a(aW1+24*j+4*ks+2*q,2)}, {v(vTR1)} offset:{6144*j+1024*ks+256*q}")
e(f"s_mov_b32 s36, {f2u(1/96):#x}")
e(f"s_mov_b32 s37, {f2u(1e-5):#x}")
e(f"s_mov_b32 s38, {f2u(SC):#x}")
LA, LB = SR, SR+4
for r in range(4):
    e(f"v_mul_f32 {v(ST+r)}, s36, {v(ST+r)}")
for r in range(4):
    e(f"v_mul_f32 {v(SR+8+r)}, {v(ST+r)}, {v(ST+r)}")
for r in range(4):
    e(f"v_fma_f32 {v(SR+8+r)}, {v(ST+4+r)}, s36, -{v(SR+8+r)}")
for r in range(4):
    e(f"v_max_f32 {v(SR+8+r)}, 0, {v(SR+8+r)}")
for r in range(4):
    e(f"v_add_f32 {v(SR+8+r)}, s37, {v(SR+8+r)}")
for r in range(4):
    e(f"v_rsq_f32 {v(SR+8+r)}, {v(SR+8+r)}")
nop(1)
for r in range(4):
    e(f"v_mul_f32 {v(LA+r)}, s38, {v(SR+8+r)}")
for r in range(4):
    e(f"v_mul_f32 {v(LB+r)}, -{v(ST+r)}, {v(LA+r)}")
for cl in range(24):
    for h in range(2):
        pk("fma", D0+4*cl+2*h, v(D0+4*cl+2*h,2), v(LA+2*h,2), v(LB+2*h,2))
PKD = 144
for r in range(4):
    for o in range(3):
        for d in range(4):
            c = 8*o + 2*d
            e(f"v_cvt_pk_bf16_f32 {v(PKD+12*r+4*o+d)}, {v(D0+4*c+r)}, {v(D0+4*(c+1)+r)}")
        e(f"ds_write_b128 {v(vHW+r)}, {v(PKD+12*r+4*o,4)} offset:{16*o}")
e(f"s_cmp_lg_u32 {s(sW)}, 0")
e(f"s_cbranch_scc1 L_nogo")
for r in range(4):
    e(f"ds_write_b32 {v(vHW+r)}, {v(vGO+r)} offset:192")
lab("L_nogo")
e("s_waitcnt vmcnt(0)")
stamp()
for i in range(18):
    e(f"ds_write_b128 {v(vWL)}, {a(aW2+4*i,4)} offset:{1024*i}")
e("s_waitcnt lgkmcnt(0)")
e("s_barrier")
stamp()
if 'dumpH' in DUMP: dump_lds(HB, 46592, 2)
for j in range(3):
    for kk in range(2):
        for cb in range(3):
            for q in range(2):
                e(f"ds_read_b64_tr_b16 {a(aW2+24*j+4*(3*kk+cb)+2*q,2)}, {v(vTR2+cb)} offset:{(32*j+16*kk+8*q)*192}")
e(f"v_lshrrev_b32 v2, 5, {v(vL)}")
e(f"v_and_b32 v3, 31, {v(vL)}")
e(f"v_mul_u32_u24 v3, {HS}, v3")
e(f"v_add_u32 {v(vGT)}, {HB+192}, v3")
e(f"v_lshl_add_u32 {v(vHR)}, v2, 4, v3")
e(f"s_mul_i32 s36, {s(sW)}, 48")
e(f"v_lshlrev_b32 v4, 3, v2")
e(f"v_add_u32 {v(vCH8)}, s36, v4")
e(f"v_lshlrev_b32 v4, 5, v2")
e(f"v_add_u32 {v(vCH4S)}, s36, v4")
e(f"v_add_u32 {v(vCH2S)}, 16, {v(vCH8)}")
e(f"v_mov_b32 {v(vRW)}, {v(vWL)}")
for k in range(1, 4):
    e(f"s_sub_u32 s36, {s(sW)}, {k}")
    e(f"s_and_b32 s36, s36, 3")
    e(f"s_mul_i32 s36, s36, {WWIN}")
    e(f"s_add_u32 s36, s36, {WB+(k-1)*3072}")
    e(f"v_add_u32 {v(vRW+k) if False else v([23,24,25][k-1])}, s36, {v(vLIN)}")
vRRk = [23, 24, 25]
e(f"s_mov_b32 {s(sK)}, {f2u(KK):#x}");  e(f"s_mov_b32 {s(sK+1)}, {f2u(KK):#x}")
e(f"s_mov_b32 {s(sONE)}, 1.0");  e(f"s_mov_b32 {s(sONE+1)}, 1.0")
e(f"s_mov_b32 {s(sINV)}, {f2u(1/SC):#x}");  e(f"s_mov_b32 {s(sINV+1)}, {f2u(1/SC):#x}")
e(f"s_mov_b32 {s(sMASKHI)}, 0xffff0000")
e(f"v_mov_b32 {v(vGB)}, {OOB}")
e(f"v_mov_b32 {v(vGC)}, {OOB}")
for ks in range(6):
    e(f"ds_read_b128 {a(aH+4*ks,4)}, {v(vHR)} offset:{32*ks}")
e(f"ds_read_b32 {v(vGA)}, {v(vGT)}")
e(f"v_add_u32 {v(vHR)}, {32*HS}, {v(vHR)}")
e(f"v_add_u32 {v(vGT)}, {32*HS}, {v(vGT)}")

def g1(j, zb):
    return [f"v_mfma_f32_32x32x16_bf16 {v(zb,16)}, {a(aW1+24*j+4*ks,4)}, {a(aH+4*ks,4)}, {'0' if ks == 0 else v(zb,16)}" for ks in range(6)]
def accr(cb): return [v(ACC0,16), a(aC1,16), a(aC2,16)][cb]
def g2(j):
    o = []
    for kk in range(2):
        for cb in range(3):
            c = '0' if (j == 0 and kk == 0) else accr(cb)
            o.append(f"v_mfma_f32_32x32x16_bf16 {accr(cb)}, {a(aW2+24*j+4*(3*kk+cb),4)}, {v(Y+4*kk,4)}, {c}")
    return o
def fin(zb, tb):
    o = [f"v_pk_mul_f32 {v(tb+2*i,2)}, {v(zb+2*i,2)}, {v(tb+2*i,2)}" for i in range(8)]
    o += [f"v_cvt_pk_bf16_f32 {v(Y+i)}, {v(tb+2*i)}, {v(tb+2*i+1)}" for i in range(8)]
    return o
def add1(tb): return [f"v_pk_add_f32 {v(tb+2*i,2)}, {v(tb+2*i,2)}, {s(sONE,2)}" for i in range(8)]
def poly(zb, tb):
    o = [f"v_pk_fma_f32 {v(tb+2*i,2)}, {v(zb+2*i,2)}, {v(zb+2*i,2)}, {s(sK,2)}" for i in range(8)]
    o += [f"v_pk_mul_f32 {v(tb+2*i,2)}, {v(zb+2*i,2)}, {v(tb+2*i,2)} neg_lo:[1,0] neg_hi:[1,0]" for i in range(8)]
    return o
def rcps(tb): return [f"v_rcp_f32 {v(tb+i)}, {v(tb+i)}" for i in range(16)]
def exps(tb): return [f"v_exp_f32 {v(tb+i)}, {v(tb+i)}" for i in range(16)]
def quad(gp):
    cb, q = gp // 4, gp % 4
    return [v(ACC0+4*q,4), a(aC1+4*q,4), a(aC2+4*q,4)][cb]
def rwrite(gp):
    k = gp // 3
    return f"ds_write_b128 {v(vRW)}, {quad(gp)} offset:{(k-1)*3072 + (gp%3)*1024}"
def rread(i):
    return f"ds_read_b128 {v(RECV+4*i,4)}, {v(vRRk[i//3])} offset:{(i%3)*1024}"
def mphase(mf, tr, extra):
    ti = 0
    n = len(mf)
    for m in range(n):
        e(mf[m])
        for x in extra.get(m, []): e(x)
        k = (len(tr) - ti + (n - m) - 1) // (n - m)
        for _ in range(k):
            e(tr[ti]); ti += 1
def out_store(goff):
    for k in range(3):
        for i in range(6):
            e(f"v_pk_fma_f32 {v(E+2*i,2)}, {v(RECV+12*k+2*i,2)}, {s(sINV,2)}, {v(E+2*i,2)}")
    e(f"v_cvt_pk_bf16_f32 {v(OP4)}, {v(E+0)}, {v(E+1)}")
    e(f"v_cvt_pk_bf16_f32 {v(OP4+1)}, {v(E+2)}, {v(E+3)}")
    e(f"v_cvt_pk_bf16_f32 {v(OP4+2)}, {v(E+8)}, {v(E+9)}")
    e(f"v_cvt_pk_bf16_f32 {v(OP4+3)}, {v(E+10)}, {v(E+11)}")
    e(f"v_cvt_pk_bf16_f32 {v(OP2)}, {v(E+4)}, {v(E+5)}")
    e(f"v_cvt_pk_bf16_f32 {v(OP2+1)}, {v(E+6)}, {v(E+7)}")
    e(f"v_add_u32 {v(vTA)}, {v(goff)}, {v(vCH4S)}")
    e(f"v_add_u32 {v(vTBb)}, {v(goff)}, {v(vCH2S)}")
    e(f"v_permlane32_swap_b32 {v(OP4)}, {v(OP4+2)}")
    e(f"v_permlane32_swap_b32 {v(OP4+1)}, {v(OP4+3)}")
    e(f"buffer_store_dwordx2 {v(OP2,2)}, {v(vTBb)}, {s(SO,4)}, 0 offen")
    e(f"buffer_store_dwordx4 {v(OP4,4)}, {v(vTA)}, {s(SO,4)}, 0 offen")
def e_init():
    for i in range(6):
        e(f"v_lshlrev_b32 {v(E+2*i)}, 16, {v(XR+i)}")
        e(f"v_and_b32 {v(E+2*i+1)}, {s(sMASKHI)}, {v(XR+i)}")
    for i in range(6):
        e(f"v_pk_fma_f32 {v(E+2*i,2)}, {v(ACC0+2*i,2)}, {s(sINV,2)}, {v(E+2*i,2)}")
def res_load(goff):
    e(f"v_add_u32 {v(vTA)}, {v(goff)}, {v(vCH8)}")
    for g in range(3):
        e(f"buffer_load_dwordx2 {v(XR+2*g,2)}, {v(vTA)}, {s(SX,4)}, 0 offen offset:{16*g}")

e("s_waitcnt lgkmcnt(0)")
stamp()
for x in g1(0, Z[0]): e(x)
for x in g1(1, Z[1]): e(x)
nop(8)
for x in poly(Z[0], TT[0]): e(x)
for x in exps(TT[0]): e(x)
res_load(vGB)
e(f"s_mov_b32 {s(sCNT)}, 0")
loop_start = len(L)
lab("L_loop")
for x in fin(Z[2], TT[2]): e(x)
for x in add1(TT[0]): e(x)
for x in poly(Z[1], TT[1]): e(x)
out_store(vGC)
ex = {}
for ks in range(6):
    ex[6+ks] = [f"ds_read_b128 {a(aH+4*ks,4)}, {v(vHR)} offset:{32*ks}"]
ex[8].append(rwrite(3)); ex[9].append(rwrite(4)); ex[10].append(rwrite(5)); ex[11].append(rwrite(6))
mphase(g2(2) + g1(2, Z[2]), rcps(TT[0]) + exps(TT[1]), ex)
for x in fin(Z[0], TT[0]): e(x)
for x in add1(TT[1]): e(x)
for x in poly(Z[2], TT[2]): e(x)
e("s_waitcnt vmcnt(2)")
e_init()
e(f"v_mov_b32 {v(vGC)}, {v(vGB)}")
e(f"v_mov_b32 {v(vGB)}, {v(vGA)}")
res_load(vGB)
e(f"s_waitcnt lgkmcnt(1)")
ex = {m: [rwrite(7+m)] for m in range(5)}
ex[5] = [f"ds_read_b32 {v(vGA)}, {v(vGT)}"]
mphase(g1(0, Z[0]) + g2(0), rcps(TT[1]) + exps(TT[2]), ex)
e("s_waitcnt lgkmcnt(0)")
e("s_barrier")
for x in fin(Z[1], TT[1]): e(x)
for x in add1(TT[2]): e(x)
for x in poly(Z[0], TT[0]): e(x)
e(f"v_add_u32 {v(vHR)}, {32*HS}, {v(vHR)}")
e(f"v_add_u32 {v(vGT)}, {32*HS}, {v(vGT)}")
e(f"v_xor_b32 {v(vRW)}, {v(vRW)}, v36")
e(f"s_cmp_eq_u32 {s(sCNT)}, 5")
e(f"s_cselect_b32 s36, 4, 32")
e(f"v_and_b32 v3, 31, {v(vL)}")
e(f"v_cmp_gt_u32 vcc, s36, v3")
e(f"v_mov_b32 v4, {OOB}")
nop(1)
e(f"v_cndmask_b32 {v(vGA)}, v4, {v(vGA)}, vcc")
ex = {m: [rread(m)] for m in range(9)}
mphase(g1(1, Z[1]) + g2(1), rcps(TT[2]) + exps(TT[0]), ex)
for k in range(3):
    e(f"v_xor_b32 {v(vRRk[k])}, {v(vRRk[k])}, {v([37,14,15][k])}")
e(f"s_add_u32 {s(sCNT)}, {s(sCNT)}, 1")
e(f"s_cmp_lt_u32 {s(sCNT)}, 7")
e("s_waitcnt lgkmcnt(0)")
e("s_cbranch_scc1 L_loop")
loop_end = len(L)
stamp()
for x in fin(Z[2], TT[2]): e(x)
out_store(vGC)
for x in g2(2): e(x)
e("s_waitcnt vmcnt(2)")
nop(12)
for gp in range(3, 12): e(rwrite(gp))
e_init()
e("s_waitcnt lgkmcnt(0)")
e("s_barrier")
for i in range(9): e(rread(i))
e("s_waitcnt lgkmcnt(0)")
out_store(vGB)
stamp()
if DEBUG_STAMPS:
    e("s_waitcnt vmcnt(0)")
    stamp()
    e("s_waitcnt lgkmcnt(0)")
    e(f"s_cmp_lg_u32 s2, 100")
    e(f"s_cbranch_scc1 L_end")
    e(f"s_cmp_lg_u32 {s(sW)}, 0")
    e(f"s_cbranch_scc1 L_end")
    e(f"s_mov_b64 exec, 1")
    e(f"v_mov_b32 v3, 0")
    for i in range(1, nstamp[0]):
        e(f"s_sub_u32 s36, {s(sSTAMP+2*i)}, {s(sSTAMP)}")
        e(f"v_mov_b32 v2, s36")
        e(f"buffer_store_dword v2, v3, {s(SDBG,4)}, 0 offen offset:{4*(i-1)}")
    e("s_waitcnt vmcnt(0)")

setup = []
def se(x): setup.append("    " + x)
se(f"v_add_u32 v36, 9216, {v(vRW)}")
se(f"v_xor_b32 v36, v36, {v(vRW)}")
for k in range(3):
    r = [37, 14, 15][k]
    se(f"v_add_u32 {v(r)}, 9216, {v(vRRk[k])}")
    se(f"v_xor_b32 {v(r)}, {v(r)}, {v(vRRk[k])}")
L[loop_start:loop_start] = setup
loop_start += len(setup); loop_end += len(setup)

probs = check_hazards(L, "all")
probs += check_hazards(L[loop_start:loop_end] + L[loop_start:loop_end], "loop2")
seen = set()
for p in probs:
    if p not in seen: print(p); seen.add(p)
open(OUTF, 'w').write(header() + "\n".join(L) + "\n" + footer())
print("lines", len(L), "stamps", nstamp[0])
```

```python
import math, struct, sys
from asmlib import check_hazards

ARGS = sys.argv[1:]
DEBUG_STAMPS = 'stamp' in ARGS
DUMP = [x for x in ARGS if x.startswith('dump')]
OUTF = [x[4:] for x in ARGS if x.startswith('out=')]
OUTF = OUTF[0] if OUTF else 'standalone__convnext_block__vision.s'

def f2u(x): return struct.unpack('<I', struct.pack('<f', x))[0]
C1 = 2*math.sqrt(2/math.pi)*math.log2(math.e)
C3 = C1*0.044715
SC = C3**(1/3)
KK = C1/SC

XB = 0
TB = 92352; TS = 568
DB = 146880
HB = 0; HS = 208
WB = 46592; WWIN = 18432
LDS_TOTAL = 163264
OOB = 0x40000000

L = []
def e(s): L.append("    " + s)
def lab(s): L.append(s + ":")
def cm(s): L.append("    ; " + s)
def nop(n): e(f"s_nop {n-1}")
def v(i, n=1): return f"v{i}" if n == 1 else f"v[{i}:{i+n-1}]"
def a(i, n=1): return f"a{i}" if n == 1 else f"a[{i}:{i+n-1}]"
def s(i, n=1): return f"s{i}" if n == 1 else f"s[{i}:{i+n-1}]"

SX, SDW, SW1, SW2, SO, SDBG, SWS = 4, 8, 12, 16, 20, 24, 64
sW, sY0, sX0 = 28, 29, 30
sK, sONE, sINV = 40, 42, 44
sSELL, sSELH = 46, 47
sROW = 48
sCNT = 53
sEX60, sEX49, sEX48, sEX24 = 54, 56, 58, 60
sDBW = 62
sMASKHI = 63
sSTAMP = 70
nstamp = [0]
STAMPSEL = [1,2,4,6,7,9,10,11,12,13,14]
def stamp():
    if DEBUG_STAMPS:
        e(f"s_memtime {s(sSTAMP+2*nstamp[0],2)}")
        nstamp[0] += 1

vL = 1
vXOFF = 16
vXW, vPADW, vDWG, vDWL, vTS1, vTS2, vTD, vW1G, vW2G, vLIN = 20,21,22,23,24,25,26,27,28,29
vAA = 30
vBA = 38
vHW = 39
vGO = 43
vSW = 47
XS = 48
D0 = 48
AB = 144
PT = 144
DWS = 160
TRT = 172
ST = 224
vTR1, vTR2, vHR, vGT, vRW, vRR = 16, 17, 20, 21, 22, 25
vGA, vGB, vGC, vCH8, vCH4S, vCH2S, vWL = 26, 27, 28, 30, 31, 32, 33
vTA, vTBb = 34, 35
Z = [48, 64, 80]; TT = [96, 112, 128]; Y = 144; ACC0 = 152; RECV = 168; E = 204; XR = 216; OP4 = 224; OP2 = 228
aW1, aW2, aH, aC1, aC2 = 0, 72, 144, 168, 184

def header():
    return f"""; ConvNeXt block (depthwise 7x7 -> LayerNorm -> MLP(GELU) -> residual), gfx950
; @launch grid=(256,1,1) block=(256,1,1) lds={LDS_TOTAL}
.amdgcn_target "amdgcn-amd-amdhsa--gfx950"
.text
.globl standalone__convnext_block__vision_kernel
.p2align 8
.type standalone__convnext_block__vision_kernel,@function
standalone__convnext_block__vision_kernel:
"""
def footer():
    return """L_end:
    s_endpgm
.section .rodata,"a"
.p2align 6
.amdhsa_kernel standalone__convnext_block__vision_kernel
  .amdhsa_next_free_vgpr 512
  .amdhsa_next_free_sgpr 102
  .amdhsa_accum_offset 256
  .amdhsa_group_segment_fixed_size 0
  .amdhsa_kernarg_size 56
  .amdhsa_user_sgpr_count 2
  .amdhsa_user_sgpr_kernarg_segment_ptr 1
  .amdhsa_system_sgpr_workgroup_id_x 1
.end_amdhsa_kernel
"""
def srd(base, nbytes):
    e(f"s_mov_b32 {s(base+2)}, {nbytes}")
    e(f"s_mov_b32 {s(base+3)}, 0x00020000")

def dump_regs(first, n, slot):
    e(f"s_lshl_b32 s36, s2, 8")
    e(f"v_add_u32 v2, s36, v0")
    e(f"v_mul_u32_u24 v2, {n*4}, v2")
    e(f"s_mov_b32 s36, {slot*0x4000000}")
    for i in range(0, n, 4):
        e(f"buffer_store_dwordx4 {v(first+i,4)}, v2, {s(SWS,4)}, s36 offen offset:{4*i}")
    e("s_waitcnt vmcnt(0)")
def dump_lds(base, nbytes, slot):
    e("s_barrier")
    e(f"s_mul_i32 s36, s2, {nbytes}")
    e(f"s_add_u32 s36, s36, {slot*0x4000000}")
    e(f"v_lshlrev_b32 v2, 4, v0")
    for o in range(0, nbytes, 4096):
        e(f"v_add_u32 v3, {base+o}, v2")
        e(f"ds_read_b128 v[4:7], v3")
        e(f"v_add_u32 v3, {o}, v2")
        e(f"v_cmp_gt_u32 vcc, {nbytes}, v3")
        e(f"v_mov_b32 v8, {OOB}")
        nop(1)
        e(f"v_cndmask_b32 v3, v8, v3, vcc")
        e("s_waitcnt lgkmcnt(0)")
        e(f"buffer_store_dwordx4 v[4:7], v3, {s(SWS,4)}, s36 offen")
        e("s_waitcnt vmcnt(0)")
    e("s_barrier")

e("s_cmp_ge_u32 s2, 256")
e("s_cbranch_scc1 L_end")
stamp()
if DEBUG_STAMPS: e("s_memrealtime s[100:101]")
e(f"s_load_dwordx2 {s(SX,2)}, s[0:1], 0")
e(f"s_load_dwordx2 {s(SDW,2)}, s[0:1], 8")
e(f"s_load_dwordx2 {s(SW1,2)}, s[0:1], 16")
e(f"s_load_dwordx2 {s(SW2,2)}, s[0:1], 24")
e(f"s_load_dwordx2 {s(SO,2)}, s[0:1], 32")
if DEBUG_STAMPS: e(f"s_load_dwordx2 {s(SDBG,2)}, s[0:1], 40")
if DUMP: e(f"s_load_dwordx2 {s(SWS,2)}, s[0:1], 48")
e(f"v_lshrrev_b32 v2, 6, v0")
e(f"v_and_b32 {v(vL)}, 63, v0")
e(f"v_readfirstlane_b32 {s(sW)}, v2")
e(f"s_and_b32 s32, s2, 7")
e(f"s_lshr_b32 s33, s2, 3")
e(f"s_lshr_b32 s34, s32, 1")
e(f"s_lshl_b32 s34, s34, 2")
e(f"s_lshr_b32 s35, s33, 3")
e(f"s_add_u32 s34, s34, s35")
e(f"s_and_b32 s32, s32, 1")
e(f"s_lshl_b32 s32, s32, 3")
e(f"s_and_b32 s33, s33, 7")
e(f"s_add_u32 s32, s32, s33")
e(f"s_mul_i32 {s(sY0)}, s34, 14")
e(f"s_mul_i32 {s(sX0)}, s32, 14")
srd(SX, 9633792); srd(SDW, 9408); srd(SW1, 73728); srd(SW2, 73728); srd(SO, 9633792)
if DEBUG_STAMPS: srd(SDBG, 256)
if DUMP: srd(SWS, 268435456)
e(f"v_mul_u32_u24 v2, 43, {v(vL)}")
e(f"v_lshrrev_b32 v2, 9, v2")
e(f"v_mul_u32_u24 v3, 12, v2")
e(f"v_sub_u32 v3, {v(vL)}, v3")
e(f"s_sub_u32 s32, {s(sX0)}, 3")
e(f"v_lshlrev_b32 v4, 2, v2")
e(f"v_add_u32 v4, s32, v4")
e(f"v_lshlrev_b32 v5, 4, v3")
e(f"v_mov_b32 v7, {OOB}")
e(f"v_cmp_gt_u32 vcc, 60, {v(vL)}")
e(f"s_movk_i32 s33, 224")
e(f"s_movk_i32 s34, 192")
e(f"v_cndmask_b32 v4, v7, v4, vcc")
for j in range(4):
    e(f"v_add_u32 v6, {j}, v4")
    e(f"v_cmp_gt_u32 vcc, s33, v6")
    e(f"v_mad_u32_u24 v8, v6, s34, v5")
    nop(1)
    e(f"v_cndmask_b32 {v(vXOFF+j)}, v7, v8, vcc")
e(f"s_mul_i32 s35, {s(sW)}, 5")
e(f"s_add_u32 s35, s35, {s(sY0)}")
e(f"s_sub_u32 s35, s35, 3")
for t in range(5):
    e(f"s_add_u32 s36, s35, {t}")
    e(f"s_mul_i32 s37, s36, 43008")
    e(f"s_cmp_lt_u32 s36, 224")
    e(f"s_cselect_b32 {s(sROW+t)}, s37, {OOB}")
e(f"s_mul_i32 s36, {s(sW)}, 48")
e(f"v_mul_u32_u24 {v(vDWG)}, 192, {v(vL)}")
e(f"v_add_u32 {v(vDWG)}, s36, {v(vDWG)}")
e("s_waitcnt lgkmcnt(0)")
for i in range(3):
    e(f"buffer_load_dwordx4 {v(DWS+4*i,4)}, {v(vDWG)}, {s(SDW,4)}, 0 offen offset:{16*i}")
for t in range(5):
    for j in range(4):
        e(f"buffer_load_dwordx4 {v(XS+16*t+4*j,4)}, {v(vXOFF+j)}, {s(SX,4)}, {s(sROW+t)} offen")
e(f"v_lshrrev_b32 v6, 2, {v(vL)}")
e(f"v_mul_u32_u24 v6, 768, v6")
e(f"v_and_b32 v8, 3, {v(vL)}")
e(f"v_lshlrev_b32 v8, 4, v8")
e(f"s_mul_i32 s36, {s(sW)}, 192")
e(f"v_add3_u32 {v(vW1G)}, v6, v8, s36")
e(f"s_mul_i32 s36, {s(sW)}, 18432")
e(f"v_lshlrev_b32 {v(vLIN)}, 4, {v(vL)}")
e(f"v_add_u32 {v(vW2G)}, s36, {v(vLIN)}")
for j in range(3):
    for i in range(6):
        e(f"s_mov_b32 s36, {12288*i}")
        e(f"buffer_load_dwordx4 {a(aW1+24*j+4*i,4)}, {v(vW1G)}, {s(SW1,4)}, s36 offen offset:{64*j}")
for i in range(18):
    if i % 4 == 0: e(f"s_mov_b32 s36, {1024*i}")
    e(f"buffer_load_dwordx4 {a(aW2+4*i,4)}, {v(vW2G)}, {s(SW2,4)}, s36 offen offset:{1024*(i%4)}")
stamp()
NW = 36
e(f"s_mov_b32 {s(sEX60)}, -1");  e(f"s_mov_b32 {s(sEX60+1)}, 0x0fffffff")
e(f"s_mov_b32 {s(sEX49)}, -1");  e(f"s_mov_b32 {s(sEX49+1)}, 0x0001ffff")
e(f"s_mov_b32 {s(sEX48)}, -1");  e(f"s_mov_b32 {s(sEX48+1)}, 0x0000ffff")
e(f"s_mov_b32 {s(sEX24)}, 0x00ffffff");  e(f"s_mov_b32 {s(sEX24+1)}, 0")
e(f"s_mov_b32 {s(sSELL)}, 0x05040100")
e(f"s_mov_b32 {s(sSELH)}, 0x07060302")
e(f"s_mul_i32 s36, {s(sW)}, 240")
e(f"v_mul_u32_u24 v6, 7696, v3")
e(f"v_add_u32 v6, s36, v6")
e(f"v_lshl_add_u32 {v(vXW)}, v2, 3, v6")
e(f"v_mul_u32_u24 v8, 48, v2")
e(f"v_add3_u32 {v(vPADW)}, v6, v8, 40")
e(f"s_lshl_b32 {s(sDBW)}, {s(sW)}, 12")
e(f"s_add_u32 {s(sDBW)}, {s(sDBW)}, {DB}")
e(f"v_add_u32 {v(vSW)}, {s(sDBW)}, {v(vLIN)}")
for i in range(4): e(f"v_mov_b32 {v(12+i)}, 0")
for i in range(4):
    e(f"ds_write_b128 {v(vSW)}, {v(12,4)} offset:{1024*i}")
e(f"s_mov_b64 exec, {s(sEX60,2)}")
for ee in range(8):
    e(f"ds_write_b64 {v(vPADW)}, {v(12,2)} offset:{960*ee}")
e(f"s_mov_b64 exec, -1")
e(f"v_mul_u32_u24 v6, 37, {v(vL)}")
e(f"v_lshrrev_b32 v6, 8, v6")
e(f"v_mul_u32_u24 v6, 3, v6")
e(f"v_add3_u32 v6, v6, {v(vL)}, 3")
e(f"v_mul_u32_u24 v6, 48, v6")
e(f"v_add_u32 {v(vDWL)}, {s(sDBW)}, v6")
e(f"v_lshrrev_b32 v6, 4, {v(vL)}")
e(f"v_bfe_u32 v7, {v(vL)}, 1, 1")
e(f"v_lshl_add_u32 v6, v6, 1, v7")
e(f"v_bfe_u32 v7, {v(vL)}, 2, 2")
e(f"v_and_b32 v8, 1, {v(vL)}")
e(f"v_lshlrev_b32 v8, 3, v8")
e(f"v_add_u32 v8, {s(sDBW)}, v8")
e(f"v_and_b32 v9, 4, v6")
e(f"v_and_b32 v10, 3, v6")
e(f"v_sub_u32 v9, v9, v10")
e(f"v_add3_u32 v9, v9, v7, 3")
e(f"v_mul_u32_u24 v9, 48, v9")
e(f"v_add_u32 {v(vTS1)}, v9, v8")
e(f"v_lshrrev_b32 v9, 1, v6")
e(f"v_mul_u32_u24 v9, 10, v9")
e(f"v_and_b32 v10, 1, v6")
e(f"v_sub_u32 v9, v9, v10")
e(f"v_add3_u32 v9, v9, v7, 9")
e(f"v_mul_u32_u24 v9, 48, v9")
e(f"v_add_u32 {v(vTS2)}, v9, v8")
e(f"s_mul_i32 s36, {s(sW)}, {24*TS}")
e(f"s_add_u32 s36, s36, {TB}")
e(f"v_and_b32 v6, 7, {v(vL)}")
e(f"v_mul_u32_u24 v6, {TS}, v6")
e(f"v_lshrrev_b32 v7, 3, {v(vL)}")
e(f"v_lshlrev_b32 v7, 3, v7")
e(f"v_add3_u32 {v(vTD)}, v6, v7, s36")
e(f"v_mul_u32_u24 v6, {TS}, {v(vL)}")
e(f"v_add_u32 v6, s36, v6")
e(f"s_mov_b64 exec, {s(sEX24,2)}")
e(f"ds_write_b64 v6, {v(12,2)} offset:448")
e(f"s_mov_b64 exec, -1")
e(f"v_bfe_u32 v2, {v(vL)}, 3, 1")
e(f"v_bfe_u32 v3, {v(vL)}, 2, 1")
e(f"v_and_b32 v4, 3, {v(vL)}")
e(f"v_bfe_u32 v5, {v(vL)}, 4, 1")
e(f"v_lshrrev_b32 v6, 5, {v(vL)}")
e(f"v_lshlrev_b32 v7, 1, v5")
e(f"v_sub_u32 v7, v7, v2")
e(f"v_lshlrev_b32 v8, 1, v6")
e(f"v_sub_u32 v8, v8, v3")
MUL = [ST+0, ST+1]; OFF = [ST+2, ST+3]
for G in range(2):
    e(f"v_add_u32 v9, {G}, v8")
    e(f"v_lshl_add_u32 v10, v9, 2, v4")
    e(f"v_lshlrev_b32 v10, 3, v10")
    e(f"v_mov_b32 {v(MUL[G])}, 0")
    e(f"v_mov_b32 {v(OFF[G])}, 448")
    e(f"v_cmp_gt_u32 vcc, 2, v9")
    e(f"v_mov_b32 v11, 64")
    nop(1)
    e(f"v_cndmask_b32 {v(MUL[G])}, {v(MUL[G])}, v11, vcc")
    e(f"v_cndmask_b32 {v(OFF[G])}, {v(OFF[G])}, v10, vcc")
    e(f"v_lshrrev_b32 v11, 4, v10")
    e(f"v_cmp_eq_u32 vcc, 5, v11")
    e(f"v_lshlrev_b32 v10, 3, v4")
    e(f"v_add_u32 v10, 440, v10")
    e(f"v_mov_b32 v11, 16")
    e(f"v_cndmask_b32 {v(OFF[G])}, {v(OFF[G])}, v10, vcc")
    e(f"v_cndmask_b32 {v(MUL[G])}, {v(MUL[G])}, v11, vcc")
e(f"v_mov_b32 v11, 448")
for sidx in range(4):
    cs = (sidx & 1) + 4*(sidx >> 1)
    e(f"v_add_u32 v9, {cs}, v7")
    e(f"v_cmp_gt_u32 vcc, 7, v9")
    for G in range(2):
        e(f"v_mad_u32_u24 v{12+G}, v9, {v(MUL[G])}, {v(OFF[G])}")
    for G in range(2):
        e(f"v_cndmask_b32 v{12+G}, v11, v{12+G}, vcc")
        e(f"v_add_u32 {v(vAA+2*sidx+G)}, s36, v{12+G}")
e(f"v_bfe_u32 v9, {v(vL)}, 1, 3")
e(f"v_min_u32 v9, 6, v9")
e(f"v_and_b32 v10, 1, {v(vL)}")
e(f"v_add_u32 v11, v9, v5")
e(f"v_mul_u32_u24 v11, 96, v11")
e(f"v_add_u32 v12, v10, v6")
e(f"v_lshl_add_u32 v11, v12, 4, v11")
e(f"s_mul_i32 s37, {s(sW)}, {24*960+48}")
e(f"v_add_u32 {v(vBA)}, s37, v11")
e(f"v_and_b32 v2, 15, {v(vL)}")
e(f"v_mul_u32_u24 v3, 6, v6")
e(f"v_lshl_add_u32 v3, v5, 2, v3")
e(f"v_mul_u32_u24 v3, 14, v3")
e(f"v_add_u32 v3, v3, v2")
e(f"v_mul_u32_u24 v4, 14, v6")
e(f"v_add_u32 v4, v4, v9")
e(f"v_add_u32 v4, 168, v4")
e(f"v_mov_b32 v7, 200")
e(f"s_mul_i32 s37, {s(sW)}, 48")
e(f"s_add_u32 s37, s37, {HB}")
e(f"s_movk_i32 s38, {HS}")
e(f"v_cmp_eq_u32 vcc, 0, v10")
nop(2)
e(f"v_cndmask_b32 v8, v7, v4, vcc")
e(f"v_add_u32 v4, 7, v4")
e(f"v_cndmask_b32 v4, v7, v4, vcc")
e(f"v_cmp_eq_u32 {s(32,2)}, 1, v5")
e(f"v_cmp_gt_u32 vcc, 14, v2")
nop(1)
for r in range(4):
    e(f"v_add_u32 v11, {14*r}, v3")
    if r == 2: e(f"v_cndmask_b32 v11, v11, v8, {s(32,2)}")
    if r == 3: e(f"v_cndmask_b32 v11, v11, v4, {s(32,2)}")
    e(f"v_cndmask_b32 v11, v7, v11, vcc")
    e(f"v_mad_u32_u24 {v(vHW+r)}, v11, s38, v11" if False else f"v_mul_u32_u24 v11, {HS}, v11")
    e(f"v_add_u32 {v(vHW+r)}, s37, v11")
e(f"v_lshl_add_u32 v11, v9, 1, v6")
e(f"v_add_u32 v11, {s(sY0)}, v11")
e(f"v_mul_u32_u24 v11, 224, v11")
e(f"v_lshlrev_b32 v12, 3, v10")
e(f"v_lshl_add_u32 v12, v5, 2, v12")
e(f"v_add3_u32 v11, v11, v12, {s(sX0)}")
e(f"v_mul_u32_u24 {v(vGO)}, 192, v11")
for r in range(1, 4):
    e(f"v_add_u32 {v(vGO+r)}, {192*r}, {v(vGO)}")
e(f"s_waitcnt vmcnt({20+NW})")
e(f"s_mov_b64 exec, {s(sEX49,2)}")
for i in range(3):
    e(f"ds_write_b128 {v(vDWL)}, {v(DWS+4*i,4)} offset:{16*i}")
e(f"s_mov_b64 exec, -1")
items = [(vTS1, 480*i+16*o, 8*TS*o+64*i, False) for i in range(7) for o in range(3)]
items += [(vTS2, 1920*ih+16*o, 8*57+64*ih+8*TS*o, ih == 1) for ih in range(2) for o in range(3)]
for c0 in range(0, 27, 14):
    grp = items[c0:c0+14]
    for k, (src, so, do, m) in enumerate(grp):
        e(f"ds_read_b64_tr_b16 {v(TRT+2*k,2)}, {v(src)} offset:{so}")
    for k, (src, so, do, m) in enumerate(grp):
        e(f"s_waitcnt lgkmcnt({min(15,len(grp)-1)})")
        if m: e(f"s_mov_b64 exec, {s(sEX48,2)}")
        e(f"ds_write_b64 {v(vTD)}, {v(TRT+2*k,2)} offset:{do}")
        if m: e(f"s_mov_b64 exec, -1")
stamp()
e(f"s_mov_b64 exec, {s(sEX60,2)}")
for t in range(5):
    e(f"s_waitcnt vmcnt({NW + 4*(4-t)})")
    if t == 0: stamp()
    base = XS + 16*t
    for d in range(4):
        for hl in range(2):
            ee = 2*d + hl
            sel = s(sSELH) if hl else s(sSELL)
            e(f"v_perm_b32 {v(PT+2*ee)}, {v(base+4+d)}, {v(base+d)}, {sel}")
            e(f"v_perm_b32 {v(PT+2*ee+1)}, {v(base+12+d)}, {v(base+8+d)}, {sel}")
            e(f"ds_write_b64 {v(vXW)}, {v(PT+2*ee,2)} offset:{960*ee+48*t}")
e(f"s_mov_b64 exec, -1")
e("s_waitcnt lgkmcnt(0)")
stamp()
e("s_barrier")
stamp()
if 'dumpX' in DUMP: dump_lds(0, 146880, 0)
def conv_reads(cl):
    buf = AB + 32*(cl % 2)
    out = []
    for sidx in range(4):
        out.append([
            f"ds_read_b128 {v(buf+16+4*sidx,4)}, {v(vBA)} offset:{960*cl+16*(cl>>3)+48*(sidx&1)+192*(sidx>>1)}",
            f"ds_read_b64 {v(buf+4*sidx,2)}, {v(vAA+2*sidx)} offset:{TS*cl}",
            f"ds_read_b64 {v(buf+4*sidx+2,2)}, {v(vAA+2*sidx+1)} offset:{TS*cl}"])
    return out
for i in range(8): e(f"v_mov_b32 {v(ST+i)}, 0")
for grp in conv_reads(0):
    for x in grp: e(x)
def stats(cl, r):
    d = D0 + 4*cl + r
    return [f"v_add_f32 {v(ST+r)}, {v(ST+r)}, {v(d)}", f"v_fmac_f32 {v(ST+4+r)}, {v(d)}, {v(d)}"]
for cl in range(24):
    buf = AB + 32*(cl % 2)
    nxt = conv_reads(cl+1) if cl < 23 else None
    for sidx in range(4):
        e(f"s_waitcnt lgkmcnt({9 if nxt else 9-3*sidx})")
        d = v(D0+4*cl, 4)
        e(f"v_mfma_f32_16x16x32_bf16 {d}, {v(buf+4*sidx,4)}, {v(buf+16+4*sidx,4)}, {'0' if sidx == 0 else d}")
        if nxt:
            for x in nxt[sidx]: e(x)
        if cl >= 2:
            for x in stats(cl-2, sidx): e(x)
for cl in (22, 23):
    if cl == 23: nop(8)
    for r in range(4):
        for x in stats(cl, r): e(x)
stamp()
if 'dumpD' in DUMP: dump_regs(D0, 96, 1)
e(f"ds_write_b128 {v(vSW)}, {v(ST,4)}")
e(f"ds_write_b128 {v(vSW)}, {v(ST+4,4)} offset:1024")
e(f"s_mul_i32 s36, {s(sW)}, {WWIN}")
e(f"s_add_u32 s36, s36, {WB}")
e(f"v_add_u32 {v(vWL)}, s36, {v(vLIN)}")
e(f"v_lshrrev_b32 v2, 5, {v(vL)}")
e(f"v_bfe_u32 v3, {v(vL)}, 4, 1")
e(f"v_bfe_u32 v4, {v(vL)}, 2, 2")
e(f"v_and_b32 v5, 3, {v(vL)}")
e(f"v_lshl_add_u32 v6, v2, 3, v4")
e(f"v_lshlrev_b32 v6, 6, v6")
e(f"v_lshl_add_u32 v6, v3, 5, v6")
e(f"v_lshl_add_u32 v6, v5, 3, v6")
e("s_waitcnt lgkmcnt(0)")
e("s_barrier")
stamp()
SR = 192
e(f"v_add_u32 v7, {DB}, {v(vLIN)}")
for w in range(4):
    e(f"ds_read_b128 {v(SR+8*w,4)}, v7 offset:{4096*w}")
    e(f"ds_read_b128 {v(SR+8*w+4,4)}, v7 offset:{4096*w+1024}")
e(f"v_add_u32 {v(vTR1)}, s36, v6")
e(f"v_lshl_add_u32 v6, v2, 2, v4")
e(f"v_mul_u32_u24 v6, 192, v6")
e(f"v_add_u32 v6, s36, v6")
e(f"s_mul_i32 s37, {s(sW)}, 24")
e(f"v_lshlrev_b32 v8, 4, v3")
e(f"v_lshl_add_u32 v8, v5, 2, v8")
e(f"v_add_u32 v8, s37, v8")
for cb in range(3):
    e(f"v_add_u32 v9, {32*cb}, v8")
    e(f"v_subrev_u32 v10, 96, v9")
    e(f"v_min_u32 v9, v9, v10")
    e(f"v_lshl_add_u32 {v(vTR2+cb)}, v9, 1, v6")
e(f"s_waitcnt vmcnt(18)")
stamp()
for i in range(18):
    e(f"ds_write_b128 {v(vWL)}, {a(aW1+4*i,4)} offset:{1024*i}")
e(f"s_waitcnt lgkmcnt(15)")
e(f"s_waitcnt lgkmcnt(15)")
def pk(op, d, *srcs, mod=""):
    e(f"v_pk_{op}_f32 {v(d,2)}, " + ", ".join(srcs) + mod)
e("s_waitcnt lgkmcnt(0)")
for k in range(0, 8, 2):
    pk("add", ST+k, v(SR+k,2), v(SR+8+k,2))
    pk("add", SR+16+k, v(SR+16+k,2), v(SR+24+k,2))
for k in range(0, 8, 2):
    pk("add", ST+k, v(ST+k,2), v(SR+16+k,2))
for j in range(3):
    for ks in range(6):
        for q in range(2):
            e(f"ds_read_b64_tr_b16 {a(aW1+24*j+4*ks+2*q,2)}, {v(vTR1)} offset:{6144*j+1024*ks+256*q}")
e(f"s_mov_b32 s36, {f2u(1/96):#x}")
e(f"s_mov_b32 s37, {f2u(1e-5):#x}")
e(f"s_mov_b32 s38, {f2u(SC):#x}")
LA, LB = SR, SR+4
for r in range(4):
    e(f"v_mul_f32 {v(ST+r)}, s36, {v(ST+r)}")
for r in range(4):
    e(f"v_mul_f32 {v(SR+8+r)}, {v(ST+r)}, {v(ST+r)}")
for r in range(4):
    e(f"v_fma_f32 {v(SR+8+r)}, {v(ST+4+r)}, s36, -{v(SR+8+r)}")
for r in range(4):
    e(f"v_max_f32 {v(SR+8+r)}, 0, {v(SR+8+r)}")
for r in range(4):
    e(f"v_add_f32 {v(SR+8+r)}, s37, {v(SR+8+r)}")
for r in range(4):
    e(f"v_rsq_f32 {v(SR+8+r)}, {v(SR+8+r)}")
nop(1)
for r in range(4):
    e(f"v_mul_f32 {v(LA+r)}, s38, {v(SR+8+r)}")
for r in range(4):
    e(f"v_mul_f32 {v(LB+r)}, -{v(ST+r)}, {v(LA+r)}")
for cl in range(24):
    for h in range(2):
        pk("fma", D0+4*cl+2*h, v(D0+4*cl+2*h,2), v(LA+2*h,2), v(LB+2*h,2))
PKD = 144
for r in range(4):
    for o in range(3):
        for d in range(4):
            c = 8*o + 2*d
            e(f"v_cvt_pk_bf16_f32 {v(PKD+12*r+4*o+d)}, {v(D0+4*c+r)}, {v(D0+4*(c+1)+r)}")
        e(f"ds_write_b128 {v(vHW+r)}, {v(PKD+12*r+4*o,4)} offset:{16*o}")
e(f"s_cmp_lg_u32 {s(sW)}, 0")
e(f"s_cbranch_scc1 L_nogo")
for r in range(4):
    e(f"ds_write_b32 {v(vHW+r)}, {v(vGO+r)} offset:192")
lab("L_nogo")
e("s_waitcnt vmcnt(0)")
stamp()
for i in range(18):
    e(f"ds_write_b128 {v(vWL)}, {a(aW2+4*i,4)} offset:{1024*i}")
e("s_waitcnt lgkmcnt(0)")
e("s_barrier")
stamp()
if 'dumpH' in DUMP: dump_lds(HB, 46592, 2)
for j in range(3):
    for kk in range(2):
        for cb in range(3):
            for q in range(2):
                e(f"ds_read_b64_tr_b16 {a(aW2+24*j+4*(3*kk+cb)+2*q,2)}, {v(vTR2+cb)} offset:{(32*j+16*kk+8*q)*192}")
e(f"v_lshrrev_b32 v2, 5, {v(vL)}")
e(f"v_and_b32 v3, 31, {v(vL)}")
e(f"v_mul_u32_u24 v3, {HS}, v3")
e(f"v_add_u32 {v(vGT)}, {HB+192}, v3")
e(f"v_lshl_add_u32 {v(vHR)}, v2, 4, v3")
e(f"s_mul_i32 s36, {s(sW)}, 48")
e(f"v_lshlrev_b32 v4, 3, v2")
e(f"v_add_u32 {v(vCH8)}, s36, v4")
e(f"v_lshlrev_b32 v4, 5, v2")
e(f"v_add_u32 {v(vCH4S)}, s36, v4")
e(f"v_add_u32 {v(vCH2S)}, 16, {v(vCH8)}")
e(f"v_mov_b32 {v(vRW)}, {v(vWL)}")
for k in range(1, 4):
    e(f"s_sub_u32 s36, {s(sW)}, {k}")
    e(f"s_and_b32 s36, s36, 3")
    e(f"s_mul_i32 s36, s36, {WWIN}")
    e(f"s_add_u32 s36, s36, {WB+(k-1)*3072}")
    e(f"v_add_u32 {v(vRW+k) if False else v([23,24,25][k-1])}, s36, {v(vLIN)}")
vRRk = [23, 24, 25]
e(f"s_mov_b32 {s(sK)}, {f2u(KK):#x}");  e(f"s_mov_b32 {s(sK+1)}, {f2u(KK):#x}")
e(f"s_mov_b32 {s(sONE)}, 1.0");  e(f"s_mov_b32 {s(sONE+1)}, 1.0")
e(f"s_mov_b32 {s(sINV)}, {f2u(1/SC):#x}");  e(f"s_mov_b32 {s(sINV+1)}, {f2u(1/SC):#x}")
e(f"s_mov_b32 {s(sMASKHI)}, 0xffff0000")
e(f"v_mov_b32 {v(vGB)}, {OOB}")
e(f"v_mov_b32 {v(vGC)}, {OOB}")
for ks in range(6):
    e(f"ds_read_b128 {a(aH+4*ks,4)}, {v(vHR)} offset:{32*ks}")
e(f"ds_read_b32 {v(vGA)}, {v(vGT)}")
e(f"v_add_u32 {v(vHR)}, {32*HS}, {v(vHR)}")
e(f"v_add_u32 {v(vGT)}, {32*HS}, {v(vGT)}")

def g1(j, zb):
    return [f"v_mfma_f32_32x32x16_bf16 {v(zb,16)}, {a(aW1+24*j+4*ks,4)}, {a(aH+4*ks,4)}, {'0' if ks == 0 else v(zb,16)}" for ks in range(6)]
def accr(cb): return [v(ACC0,16), a(aC1,16), a(aC2,16)][cb]
def g2(j):
    o = []
    for kk in range(2):
        for cb in range(3):
            c = '0' if (j == 0 and kk == 0) else accr(cb)
            o.append(f"v_mfma_f32_32x32x16_bf16 {accr(cb)}, {a(aW2+24*j+4*(3*kk+cb),4)}, {v(Y+4*kk,4)}, {c}")
    return o
def fin(zb, tb):
    o = [f"v_pk_mul_f32 {v(tb+2*i,2)}, {v(zb+2*i,2)}, {v(tb+2*i,2)}" for i in range(8)]
    o += [f"v_cvt_pk_bf16_f32 {v(Y+i)}, {v(tb+2*i)}, {v(tb+2*i+1)}" for i in range(8)]
    return o
def add1(tb): return [f"v_pk_add_f32 {v(tb+2*i,2)}, {v(tb+2*i,2)}, {s(sONE,2)}" for i in range(8)]
def poly(zb, tb):
    o = [f"v_pk_fma_f32 {v(tb+2*i,2)}, {v(zb+2*i,2)}, {v(zb+2*i,2)}, {s(sK,2)}" for i in range(8)]
    o += [f"v_pk_mul_f32 {v(tb+2*i,2)}, {v(zb+2*i,2)}, {v(tb+2*i,2)} neg_lo:[1,0] neg_hi:[1,0]" for i in range(8)]
    return o
def rcps(tb): return [f"v_rcp_f32 {v(tb+i)}, {v(tb+i)}" for i in range(16)]
def exps(tb): return [f"v_exp_f32 {v(tb+i)}, {v(tb+i)}" for i in range(16)]
def quad(gp):
    cb, q = gp // 4, gp % 4
    return [v(ACC0+4*q,4), a(aC1+4*q,4), a(aC2+4*q,4)][cb]
def rwrite(gp):
    k = gp // 3
    return f"ds_write_b128 {v(vRW)}, {quad(gp)} offset:{(k-1)*3072 + (gp%3)*1024}"
def rread(i):
    return f"ds_read_b128 {v(RECV+4*i,4)}, {v(vRRk[i//3])} offset:{(i%3)*1024}"
def mphase(mf, tr, extra):
    ti = 0
    n = len(mf)
    for m in range(n):
        e(mf[m])
        for x in extra.get(m, []): e(x)
        k = (len(tr) - ti + (n - m) - 1) // (n - m)
        for _ in range(k):
            e(tr[ti]); ti += 1
def out_store(goff):
    for k in range(3):
        for i in range(6):
            e(f"v_pk_fma_f32 {v(E+2*i,2)}, {v(RECV+12*k+2*i,2)}, {s(sINV,2)}, {v(E+2*i,2)}")
    e(f"v_cvt_pk_bf16_f32 {v(OP4)}, {v(E+0)}, {v(E+1)}")
    e(f"v_cvt_pk_bf16_f32 {v(OP4+1)}, {v(E+2)}, {v(E+3)}")
    e(f"v_cvt_pk_bf16_f32 {v(OP4+2)}, {v(E+8)}, {v(E+9)}")
    e(f"v_cvt_pk_bf16_f32 {v(OP4+3)}, {v(E+10)}, {v(E+11)}")
    e(f"v_cvt_pk_bf16_f32 {v(OP2)}, {v(E+4)}, {v(E+5)}")
    e(f"v_cvt_pk_bf16_f32 {v(OP2+1)}, {v(E+6)}, {v(E+7)}")
    e(f"v_add_u32 {v(vTA)}, {v(goff)}, {v(vCH4S)}")
    e(f"v_add_u32 {v(vTBb)}, {v(goff)}, {v(vCH2S)}")
    e(f"v_permlane32_swap_b32 {v(OP4)}, {v(OP4+2)}")
    e(f"v_permlane32_swap_b32 {v(OP4+1)}, {v(OP4+3)}")
    e(f"buffer_store_dwordx2 {v(OP2,2)}, {v(vTBb)}, {s(SO,4)}, 0 offen")
    e(f"buffer_store_dwordx4 {v(OP4,4)}, {v(vTA)}, {s(SO,4)}, 0 offen")
def e_init():
    for i in range(6):
        e(f"v_lshlrev_b32 {v(E+2*i)}, 16, {v(XR+i)}")
        e(f"v_and_b32 {v(E+2*i+1)}, {s(sMASKHI)}, {v(XR+i)}")
    for i in range(6):
        e(f"v_pk_fma_f32 {v(E+2*i,2)}, {v(ACC0+2*i,2)}, {s(sINV,2)}, {v(E+2*i,2)}")
def res_load(goff):
    e(f"v_add_u32 {v(vTA)}, {v(goff)}, {v(vCH8)}")
    for g in range(3):
        e(f"buffer_load_dwordx2 {v(XR+2*g,2)}, {v(vTA)}, {s(SX,4)}, 0 offen offset:{16*g}")

e("s_waitcnt lgkmcnt(0)")
stamp()
for x in g1(0, Z[0]): e(x)
for x in g1(1, Z[1]): e(x)
nop(8)
for x in poly(Z[0], TT[0]): e(x)
for x in exps(TT[0]): e(x)
res_load(vGB)
e(f"s_mov_b32 {s(sCNT)}, 0")
loop_start = len(L)
lab("L_loop")
for x in fin(Z[2], TT[2]): e(x)
for x in add1(TT[0]): e(x)
for x in poly(Z[1], TT[1]): e(x)
out_store(vGC)
ex = {}
for ks in range(6):
    ex[6+ks] = [f"ds_read_b128 {a(aH+4*ks,4)}, {v(vHR)} offset:{32*ks}"]
ex[8].append(rwrite(3)); ex[9].append(rwrite(4)); ex[10].append(rwrite(5)); ex[11].append(rwrite(6))
mphase(g2(2) + g1(2, Z[2]), rcps(TT[0]) + exps(TT[1]), ex)
for x in fin(Z[0], TT[0]): e(x)
for x in add1(TT[1]): e(x)
for x in poly(Z[2], TT[2]): e(x)
e("s_waitcnt vmcnt(2)")
e_init()
e(f"v_mov_b32 {v(vGC)}, {v(vGB)}")
e(f"v_mov_b32 {v(vGB)}, {v(vGA)}")
res_load(vGB)
e(f"s_waitcnt lgkmcnt(1)")
ex = {m: [rwrite(7+m)] for m in range(5)}
ex[5] = [f"ds_read_b32 {v(vGA)}, {v(vGT)}"]
mphase(g1(0, Z[0]) + g2(0), rcps(TT[1]) + exps(TT[2]), ex)
e("s_waitcnt lgkmcnt(0)")
e("s_barrier")
for x in fin(Z[1], TT[1]): e(x)
for x in add1(TT[2]): e(x)
for x in poly(Z[0], TT[0]): e(x)
e(f"v_add_u32 {v(vHR)}, {32*HS}, {v(vHR)}")
e(f"v_add_u32 {v(vGT)}, {32*HS}, {v(vGT)}")
e(f"v_xor_b32 {v(vRW)}, {v(vRW)}, v36")
e(f"s_cmp_eq_u32 {s(sCNT)}, 5")
e(f"s_cselect_b32 s36, 4, 32")
e(f"v_and_b32 v3, 31, {v(vL)}")
e(f"v_cmp_gt_u32 vcc, s36, v3")
e(f"v_mov_b32 v4, {OOB}")
nop(1)
e(f"v_cndmask_b32 {v(vGA)}, v4, {v(vGA)}, vcc")
ex = {m: [rread(m)] for m in range(9)}
mphase(g1(1, Z[1]) + g2(1), rcps(TT[2]) + exps(TT[0]), ex)
for k in range(3):
    e(f"v_xor_b32 {v(vRRk[k])}, {v(vRRk[k])}, {v([37,14,15][k])}")
e(f"s_add_u32 {s(sCNT)}, {s(sCNT)}, 1")
e(f"s_cmp_lt_u32 {s(sCNT)}, 7")
e("s_waitcnt lgkmcnt(0)")
e("s_cbranch_scc1 L_loop")
loop_end = len(L)
stamp()
for x in fin(Z[2], TT[2]): e(x)
out_store(vGC)
for x in g2(2): e(x)
e("s_waitcnt vmcnt(2)")
nop(12)
for gp in range(3, 12): e(rwrite(gp))
e_init()
e("s_waitcnt lgkmcnt(0)")
e("s_barrier")
for i in range(9): e(rread(i))
e("s_waitcnt lgkmcnt(0)")
out_store(vGB)
stamp()
if DEBUG_STAMPS:
    e("s_waitcnt vmcnt(0)")
    stamp()
    e("s_memrealtime s[38:39]")
    e("s_waitcnt lgkmcnt(0)")
    e(f"s_cmp_lg_u32 {s(sW)}, 0")
    e(f"s_cbranch_scc1 L_end")
    e(f"s_mov_b64 exec, 1")
    e(f"v_mov_b32 v3, 0")
    e(f"s_not_b32 s36, s100")
    e(f"v_mov_b32 v2, s36")
    e(f"v_mov_b32 v4, s38")
    e(f"buffer_atomic_umax v2, v3, {s(SDBG,4)}, 0 offen offset:56")
    e(f"buffer_atomic_umax v4, v3, {s(SDBG,4)}, 0 offen offset:60")
    e(f"v_mov_b32 v5, s100")
    e(f"buffer_atomic_umax v5, v3, {s(SDBG,4)}, 0 offen offset:52")
    e("s_waitcnt vmcnt(0)")
    e(f"s_cmp_lg_u32 s2, 100")
    e(f"s_cbranch_scc1 L_end")
    e(f"s_sub_u32 s36, s38, s100")
    e(f"v_mov_b32 v2, s36")
    e(f"buffer_store_dword v2, v3, {s(SDBG,4)}, 0 offen offset:48")
    for i in STAMPSEL:
        e(f"s_sub_u32 s36, {s(sSTAMP+2*i)}, {s(sSTAMP)}")
        e(f"v_mov_b32 v2, s36")
        e(f"buffer_store_dword v2, v3, {s(SDBG,4)}, 0 offen offset:{4*STAMPSEL.index(i)}")
    e("s_waitcnt vmcnt(0)")

setup = []
def se(x): setup.append("    " + x)
se(f"v_add_u32 v36, 9216, {v(vRW)}")
se(f"v_xor_b32 v36, v36, {v(vRW)}")
for k in range(3):
    r = [37, 14, 15][k]
    se(f"v_add_u32 {v(r)}, 9216, {v(vRRk[k])}")
    se(f"v_xor_b32 {v(r)}, {v(r)}, {v(vRRk[k])}")
L[loop_start:loop_start] = setup
loop_start += len(setup); loop_end += len(setup)

probs = check_hazards(L, "all")
probs += check_hazards(L[loop_start:loop_end] + L[loop_start:loop_end], "loop2")
seen = set()
for p in probs:
    if p not in seen: print(p); seen.add(p)
open(OUTF, 'w').write(header() + "\n".join(L) + "\n" + footer())
print("lines", len(L), "stamps", nstamp[0])
```

```python
import math, struct, sys
from asmlib import check_hazards

ARGS = sys.argv[1:]
DEBUG_STAMPS = 'stamp' in ARGS
DUMP = [x for x in ARGS if x.startswith('dump')]
OUTF = [x[4:] for x in ARGS if x.startswith('out=')]
OUTF = OUTF[0] if OUTF else 'standalone__convnext_block__vision.s'
OPT = dict(x.split('=') for x in ARGS if '=' in x and not x.startswith('out='))
CVT_IN_M = int(OPT.get('cvtm', 1))

def f2u(x): return struct.unpack('<I', struct.pack('<f', x))[0]
C1 = 2*math.sqrt(2/math.pi)*math.log2(math.e)
C3 = C1*0.044715
SC = C3**(1/3)
KK = C1/SC

STB = 0; SCR = 8192; ZB = 9216
XB = 9408
TB = XB + 92352; TS = 568
DWHI = TB + 96*TS
DWSZ = 3504
HB = XB; HS = 208
CB0 = 151552; CH = 12288
EXB = 114688; EXW = 9216
LDS_TOTAL = 163840
OOB = 0x40000000

L = []
def e(s): L.append("    " + s)
def lab(s): L.append(s + ":")
def nop(n): e(f"s_nop {n-1}")
def v(i, n=1): return f"v{i}" if n == 1 else f"v[{i}:{i+n-1}]"
def a(i, n=1): return f"a{i}" if n == 1 else f"a[{i}:{i+n-1}]"
def s(i, n=1): return f"s{i}" if n == 1 else f"s[{i}:{i+n-1}]"

SX, SDW, SW1, SW2, SO, SDBG, SWS, SWD = 4, 8, 12, 16, 20, 24, 64, 68
sW, sY0, sX0 = 28, 29, 30
sPAR = 31
sK, sSC = 40, 42
sSELL, sSELH = 46, 47
sROW = 48
sEX60, sEX49, sEX48, sEX24, sEXR = 54, 56, 58, 60, 44
sDBW = 62
sMW = 63
sDO = 72
sDU = 75
sMASKHI = 53
sSTAMP = 76
nstamp = [0]
SETS = {'A': ['start','issued','dw','preload','dma','row4','bar1','conv','hw','prefill','fill','end'],
        'B': ['start','prefill','fill','m0','m3','m6','m9','m12','m15','m18','end']}
STSET = SETS[OPT.get('st', 'A')]
def stamp(name):
    if DEBUG_STAMPS and name in STSET:
        assert nstamp[0] < 12
        e(f"s_memtime {s(sSTAMP+2*nstamp[0],2)}")
        nstamp[0] += 1

vL = 1
vXOFF = 16; vK = 16
vXW, vBA, vLIN, vWG = 20, 21, 22, 23
vHW = 24
vGOO, vGOS, vGOR, vHRO, vHRS, vHRR, vSW, vRSW, vRSR = 28, 29, 30, 31, 32, 33, 34, 35, 36
vAA = 38; PT = 38; ST = 38
vXRR = 46
vEXW = 37
XS = 48
XO, XSH, IA, IB = 48, 72, 84, 88
AV = 128
TRT = 128; DWS = 160
vPADW, vDWG, vDWL, vTS1, vTS2, vTD = 172, 173, 174, 175, 176, 177
MUL = [178, 179]; OFF = [180, 181]
BBUF = [96, 112, 128]
def Dreg(c):
    if c < 3: return 4 + 4*c
    if c == 3: return 92
    if c < 8: return 144 + 4*(c-4)
    return 160 + 4*(c-8)
def Areg(c, k, n):
    return v(AV+16*c+k, n) if c < 8 else a(16*(c-8)+k, n)
SR = 224
PKD = 96
Z = [48, 64, 80]; TT = [96, 112, 128]; Y = 144; ZR = 152; TR_ = 156
ACC = {'O': 160, 'S': 208}
aF1, aF2, aH, aHR, aBR, aCR = 0, 24, {'O': 48, 'S': 72}, 96, 120, 128

def header():
    return f"""; ConvNeXt block (depthwise 7x7 -> LayerNorm -> MLP(GELU) -> residual), gfx950
; @launch grid=(256,1,1) block=(256,1,1) lds={LDS_TOTAL}
.amdgcn_target "amdgcn-amd-amdhsa--gfx950"
.text
.globl standalone__convnext_block__vision_kernel
.p2align 8
.type standalone__convnext_block__vision_kernel,@function
standalone__convnext_block__vision_kernel:
"""
def footer():
    return """L_end:
    s_endpgm
.section .rodata,"a"
.p2align 6
.amdhsa_kernel standalone__convnext_block__vision_kernel
  .amdhsa_next_free_vgpr 512
  .amdhsa_next_free_sgpr 102
  .amdhsa_accum_offset 256
  .amdhsa_group_segment_fixed_size 0
  .amdhsa_kernarg_size 56
  .amdhsa_user_sgpr_count 2
  .amdhsa_user_sgpr_kernarg_segment_ptr 1
  .amdhsa_system_sgpr_workgroup_id_x 1
.end_amdhsa_kernel
"""
def srd(base, nbytes):
    e(f"s_mov_b32 {s(base+2)}, {nbytes}")
    e(f"s_mov_b32 {s(base+3)}, 0x00020000")

def dump_lds(base, nbytes, slot, t0=2):
    e("s_waitcnt vmcnt(0) lgkmcnt(0)")
    e("s_barrier")
    e(f"s_mul_i32 s36, s2, {nbytes}")
    e(f"s_add_u32 s36, s36, {slot*0x4000000}")
    e(f"v_lshlrev_b32 v{t0}, 4, v0")
    for o in range(0, nbytes, 4096):
        e(f"v_add_u32 v{t0+1}, {base+o}, v{t0}")
        e(f"ds_read_b128 {v(t0+2,4)}, v{t0+1}")
        e(f"v_add_u32 v{t0+1}, {o}, v{t0}")
        e(f"v_cmp_gt_u32 vcc, {nbytes}, v{t0+1}")
        e(f"v_mov_b32 v{t0+6}, {OOB}")
        nop(1)
        e(f"v_cndmask_b32 v{t0+1}, v{t0+6}, v{t0+1}, vcc")
        e("s_waitcnt lgkmcnt(0)")
        e(f"buffer_store_dwordx4 {v(t0+2,4)}, v{t0+1}, {s(SWS,4)}, s36 offen")
        e("s_waitcnt vmcnt(0)")
    e("s_barrier")

e("s_cmp_ge_u32 s2, 256")
e("s_cbranch_scc1 L_end")
stamp('start')
if DEBUG_STAMPS: e("s_memrealtime s[100:101]")
e(f"s_load_dwordx2 {s(SDW,2)}, s[0:1], 8")
e(f"s_load_dwordx2 {s(SX,2)}, s[0:1], 0")
e(f"s_load_dwordx2 {s(SW1,2)}, s[0:1], 16")
e(f"s_load_dwordx2 {s(SW2,2)}, s[0:1], 24")
e(f"s_load_dwordx2 {s(SO,2)}, s[0:1], 32")
if DEBUG_STAMPS: e(f"s_load_dwordx2 {s(SDBG,2)}, s[0:1], 40")
if DUMP: e(f"s_load_dwordx2 {s(SWS,2)}, s[0:1], 48")
e(f"v_lshrrev_b32 v2, 6, v0")
e(f"v_and_b32 {v(vL)}, 63, v0")
e(f"v_readfirstlane_b32 {s(sW)}, v2")
e(f"s_and_b32 s32, s2, 7")
e(f"s_lshr_b32 s33, s2, 3")
e(f"s_lshr_b32 s34, s32, 1")
e(f"s_lshl_b32 s34, s34, 2")
e(f"s_lshr_b32 s35, s33, 3")
e(f"s_add_u32 s34, s34, s35")
e(f"s_and_b32 s32, s32, 1")
e(f"s_lshl_b32 s32, s32, 3")
e(f"s_and_b32 s33, s33, 7")
e(f"s_add_u32 s32, s32, s33")
e(f"s_mul_i32 {s(sY0)}, s34, 14")
e(f"s_mul_i32 {s(sX0)}, s32, 14")
srd(SX, 9633792); srd(SDW, 9408)
e(f"s_mul_i32 s36, {s(sW)}, 48")
e(f"v_mul_u32_u24 {v(vDWG)}, 192, {v(vL)}")
e(f"v_add_u32 {v(vDWG)}, s36, {v(vDWG)}")
e(f"v_mul_u32_u24 v2, 43, {v(vL)}")
e(f"v_lshrrev_b32 v2, 9, v2")
e(f"v_mul_u32_u24 v3, 12, v2")
e(f"v_sub_u32 v3, {v(vL)}, v3")
e(f"s_sub_u32 s32, {s(sX0)}, 3")
e(f"v_lshlrev_b32 v4, 2, v2")
e(f"v_add_u32 v4, s32, v4")
e(f"v_lshlrev_b32 v5, 4, v3")
e(f"v_mov_b32 v7, {OOB}")
e(f"v_cmp_gt_u32 vcc, 60, {v(vL)}")
e(f"s_movk_i32 s33, 224")
e(f"s_movk_i32 s34, 192")
e(f"v_cndmask_b32 v4, v7, v4, vcc")
for j in range(4):
    e(f"v_add_u32 v6, {j}, v4")
    e(f"v_cmp_gt_u32 vcc, s33, v6")
    e(f"v_mad_u32_u24 v8, v6, s34, v5")
    nop(1)
    e(f"v_cndmask_b32 {v(vXOFF+j)}, v7, v8, vcc")
e(f"s_mul_i32 s35, {s(sW)}, 5")
e(f"s_add_u32 s35, s35, {s(sY0)}")
e(f"s_sub_u32 s35, s35, 3")
for t in range(5):
    e(f"s_add_u32 s36, s35, {t}")
    e(f"s_mul_i32 s37, s36, 43008")
    e(f"s_cmp_lt_u32 s36, 224")
    e(f"s_cselect_b32 {s(sROW+t)}, s37, {OOB}")
e("s_waitcnt lgkmcnt(0)")
for i in range(3):
    e(f"buffer_load_dwordx4 {v(DWS+4*i,4)}, {v(vDWG)}, {s(SDW,4)}, 0 offen offset:{16*i}")
for t in range(5):
    for j in range(4):
        e(f"buffer_load_dwordx4 {v(XS+16*t+4*j,4)}, {v(vXOFF+j)}, {s(SX,4)}, {s(sROW+t)} offen")
stamp('issued')
srd(SW1, 73728); srd(SW2, 73728); srd(SO, 9633792)
if DEBUG_STAMPS: srd(SDBG, 256)
if DUMP: srd(SWS, 268435456)
e(f"s_mov_b32 {s(sEX60)}, -1");  e(f"s_mov_b32 {s(sEX60+1)}, 0x0fffffff")
e(f"s_mov_b32 {s(sEX49)}, -1");  e(f"s_mov_b32 {s(sEX49+1)}, 0x0001ffff")
e(f"s_mov_b32 {s(sEX48)}, -1");  e(f"s_mov_b32 {s(sEX48+1)}, 0x0000ffff")
e(f"s_mov_b32 {s(sEX24)}, 0x00ffffff");  e(f"s_mov_b32 {s(sEX24+1)}, 0")
e(f"s_mov_b32 {s(sEXR)}, 0x00ff00ff");  e(f"s_mov_b32 {s(sEXR+1)}, 0x00ff00ff")
e(f"s_mov_b32 {s(sSELL)}, 0x05040100")
e(f"s_mov_b32 {s(sSELH)}, 0x07060302")
e(f"s_and_b32 {s(sPAR)}, {s(sW)}, 1")
e(f"s_mul_i32 s36, {s(sW)}, 240")
e(f"s_add_u32 s36, s36, {XB}")
e(f"v_mul_u32_u24 v6, 7696, v3")
e(f"v_add_u32 v6, s36, v6")
e(f"v_lshl_add_u32 {v(vXW)}, v2, 3, v6")
e(f"v_mul_u32_u24 v8, 48, v2")
e(f"v_add3_u32 {v(vPADW)}, v6, v8, 40")
e(f"s_mul_i32 {s(sDBW)}, {s(sW)}, {DWSZ}")
e(f"s_add_u32 s36, {s(sDBW)}, {DWHI-2*DWSZ}")
e(f"s_cmp_lt_u32 {s(sW)}, 2")
e(f"s_cselect_b32 {s(sDBW)}, {s(sDBW)}, s36")
e(f"v_lshlrev_b32 {v(vLIN)}, 4, {v(vL)}")
e(f"v_add_u32 v9, {s(sDBW)}, {v(vLIN)}")
for i in range(4): e(f"v_mov_b32 {v(12+i)}, 0")
for o in (0, 1024, 2048, DWSZ-1024):
    e(f"ds_write_b128 v9, {v(12,4)} offset:{o}")
e(f"v_min_u32 v9, 176, {v(vLIN)}")
e(f"ds_write_b128 v9, {v(12,4)} offset:{ZB}")
e(f"s_mov_b64 exec, {s(sEX60,2)}")
for ee in range(8):
    e(f"ds_write_b64 {v(vPADW)}, {v(12,2)} offset:{960*ee}")
e(f"s_mov_b64 exec, -1")
e(f"v_mul_u32_u24 v6, 37, {v(vL)}")
e(f"v_lshrrev_b32 v6, 8, v6")
e(f"v_mul_u32_u24 v6, 3, v6")
e(f"v_add3_u32 v6, v6, {v(vL)}, 3")
e(f"v_mul_u32_u24 v6, 48, v6")
e(f"v_add_u32 {v(vDWL)}, {s(sDBW)}, v6")
e(f"v_lshrrev_b32 v6, 4, {v(vL)}")
e(f"v_bfe_u32 v7, {v(vL)}, 1, 1")
e(f"v_lshl_add_u32 v6, v6, 1, v7")
e(f"v_bfe_u32 v7, {v(vL)}, 2, 2")
e(f"v_and_b32 v8, 1, {v(vL)}")
e(f"v_lshlrev_b32 v8, 3, v8")
e(f"v_add_u32 v8, {s(sDBW)}, v8")
e(f"v_and_b32 v9, 4, v6")
e(f"v_and_b32 v10, 3, v6")
e(f"v_sub_u32 v9, v9, v10")
e(f"v_add3_u32 v9, v9, v7, 3")
e(f"v_mul_u32_u24 v9, 48, v9")
e(f"v_add_u32 {v(vTS1)}, v9, v8")
e(f"v_lshrrev_b32 v9, 1, v6")
e(f"v_mul_u32_u24 v9, 10, v9")
e(f"v_and_b32 v10, 1, v6")
e(f"v_sub_u32 v9, v9, v10")
e(f"v_add3_u32 v9, v9, v7, 9")
e(f"v_mul_u32_u24 v9, 48, v9")
e(f"v_add_u32 {v(vTS2)}, v9, v8")
e(f"s_mul_i32 s36, {s(sW)}, {24*TS}")
e(f"s_add_u32 s36, s36, {TB}")
e(f"v_and_b32 v6, 7, {v(vL)}")
e(f"v_mul_u32_u24 v6, {TS}, v6")
e(f"v_lshrrev_b32 v7, 3, {v(vL)}")
e(f"v_lshlrev_b32 v7, 3, v7")
e(f"v_add3_u32 {v(vTD)}, v6, v7, s36")
e(f"v_mul_u32_u24 v6, {TS}, {v(vL)}")
e(f"v_add_u32 v6, s36, v6")
e(f"s_mov_b64 exec, {s(sEX24,2)}")
e(f"ds_write_b64 v6, {v(12,2)} offset:448")
e(f"s_mov_b64 exec, -1")
e(f"v_bfe_u32 v2, {v(vL)}, 3, 1")
e(f"v_bfe_u32 v3, {v(vL)}, 2, 1")
e(f"v_and_b32 v4, 3, {v(vL)}")
e(f"v_bfe_u32 v5, {v(vL)}, 4, 1")
e(f"v_lshrrev_b32 v6, 5, {v(vL)}")
e(f"v_lshlrev_b32 v7, 1, v5")
e(f"v_sub_u32 v7, v7, v2")
e(f"v_lshlrev_b32 v8, 1, v6")
e(f"v_sub_u32 v8, v8, v3")
for G in range(2):
    e(f"v_add_u32 v9, {G}, v8")
    e(f"v_lshl_add_u32 v10, v9, 2, v4")
    e(f"v_lshlrev_b32 v10, 3, v10")
    e(f"v_mov_b32 {v(MUL[G])}, 0")
    e(f"v_mov_b32 {v(OFF[G])}, 448")
    e(f"v_cmp_gt_u32 vcc, 2, v9")
    e(f"v_mov_b32 v11, 64")
    nop(1)
    e(f"v_cndmask_b32 {v(MUL[G])}, {v(MUL[G])}, v11, vcc")
    e(f"v_cndmask_b32 {v(OFF[G])}, {v(OFF[G])}, v10, vcc")
    e(f"v_lshrrev_b32 v11, 4, v10")
    e(f"v_cmp_eq_u32 vcc, 5, v11")
    e(f"v_lshlrev_b32 v10, 3, v4")
    e(f"v_add_u32 v10, 440, v10")
    e(f"v_mov_b32 v11, 16")
    e(f"v_cndmask_b32 {v(OFF[G])}, {v(OFF[G])}, v10, vcc")
    e(f"v_cndmask_b32 {v(MUL[G])}, {v(MUL[G])}, v11, vcc")
e(f"v_mov_b32 v11, 448")
for sidx in range(4):
    cs = (sidx & 1) + 4*(sidx >> 1)
    e(f"v_add_u32 v9, {cs}, v7")
    e(f"v_cmp_gt_u32 vcc, 7, v9")
    for G in range(2):
        e(f"v_mad_u32_u24 v{12+G}, v9, {v(MUL[G])}, {v(OFF[G])}")
    for G in range(2):
        e(f"v_cndmask_b32 v{12+G}, v11, v{12+G}, vcc")
        e(f"v_add_u32 {v(vAA+2*sidx+G)}, s36, v{12+G}")
e(f"s_waitcnt vmcnt(20)")
stamp('dw')
e(f"s_mov_b64 exec, {s(sEX49,2)}")
for i in range(3):
    e(f"ds_write_b128 {v(vDWL)}, {v(DWS+4*i,4)} offset:{16*i}")
e(f"s_mov_b64 exec, -1")
def titems(o):
    it = [(vTS1, 480*i+16*o, 8*TS*o+64*i, False) for i in range(7)]
    it += [(vTS2, 1920*ih+16*o, 8*57+64*ih+8*TS*o, ih == 1) for ih in range(2)]
    return it
items = titems(1) + titems(2) + titems(0)
for c0 in range(0, 27, 14):
    grp = items[c0:c0+14]
    for k, (src, so, do, m) in enumerate(grp):
        e(f"ds_read_b64_tr_b16 {v(TRT+2*k,2)}, {v(src)} offset:{so}")
    for k, (src, so, do, m) in enumerate(grp):
        e(f"s_waitcnt lgkmcnt({min(15,len(grp)-1)})")
        if m: e(f"s_mov_b64 exec, {s(sEX48,2)}")
        e(f"ds_write_b64 {v(vTD)}, {v(TRT+2*k,2)} offset:{do}")
        if m: e(f"s_mov_b64 exec, -1")
setup = []
def se(x): setup.append(x)
se(f"v_bfe_u32 v9, {v(vL)}, 1, 3")
se(f"v_min_u32 v9, 6, v9")
se(f"v_and_b32 v10, 1, {v(vL)}")
se(f"v_add_u32 v11, v9, v5")
se(f"v_mul_u32_u24 v11, 96, v11")
se(f"v_add_u32 v12, v10, v6")
se(f"v_lshl_add_u32 v11, v12, 4, v11")
se(f"s_mul_i32 s37, {s(sW)}, {24*960+48}")
se(f"s_add_u32 s37, s37, {XB}")
se(f"v_add_u32 {v(vBA)}, s37, v11")
se(f"v_and_b32 v2, 15, {v(vL)}")
se(f"v_mul_u32_u24 v3, 6, v6")
se(f"v_lshl_add_u32 v3, v5, 2, v3")
se(f"v_mul_u32_u24 v3, 14, v3")
se(f"v_add_u32 v3, v3, v2")
se(f"v_mul_u32_u24 v4, 14, v6")
se(f"v_add_u32 v4, v4, v9")
se(f"v_add_u32 v4, 168, v4")
se(f"v_mov_b32 v7, 200")
se(f"s_mul_i32 s37, {s(sW)}, 48")
se(f"s_add_u32 s37, s37, {HB}")
se(f"v_cmp_eq_u32 vcc, 0, v10")
se(f"s_nop 1")
se(f"v_cndmask_b32 v8, v7, v4, vcc")
se(f"v_add_u32 v4, 7, v4")
se(f"v_cndmask_b32 v4, v7, v4, vcc")
se(f"v_cmp_eq_u32 {s(32,2)}, 1, v5")
se(f"v_cmp_gt_u32 vcc, 14, v2")
se(f"s_nop 0")
for r in range(4):
    se(f"v_add_u32 v11, {14*r}, v3")
    if r == 2: se(f"v_cndmask_b32 v11, v11, v8, {s(32,2)}")
    if r == 3: se(f"v_cndmask_b32 v11, v11, v4, {s(32,2)}")
    se(f"v_cndmask_b32 v11, v7, v11, vcc")
    se(f"v_mul_u32_u24 v11, {HS}, v11")
    se(f"v_add_u32 {v(vHW+r)}, s37, v11")
se(f"s_lshl_b32 s37, {s(sW)}, 11")
se(f"v_add_u32 {v(vSW)}, s37, {v(vLIN)}")
se(f"s_mul_i32 s38, {s(sY0)}, 224")
se(f"s_add_u32 s38, s38, {s(sX0)}")
se(f"s_mul_i32 s38, s38, 192")
se(f"v_lshlrev_b32 v12, 4, v6")
se(f"v_add_u32 v13, s38, v12")
se(f"v_and_b32 v2, 31, {v(vL)}")
def pxoff(dst, second):
    se(f"v_mul_u32_u24 v4, 4682, v3")
    se(f"v_lshrrev_b32 v4, 16, v4")
    se(f"v_mul_u32_u24 v7, 14, v4")
    se(f"v_sub_u32 v7, v3, v7")
    se(f"v_cmp_le_u32 vcc, 6, v4")
    se(f"v_and_b32 v8, 1, v7")
    se(f"v_lshl_add_u32 v9, v8, 3, v4")
    se(f"v_sub_u32 v7, v7, v8")
    se(f"v_mul_u32_u24 v7, 224, v7")
    se(f"v_add_u32 v7, v7, v9")
    se(f"v_add_u32 v8, 218, v7")
    se(f"v_cndmask_b32 v7, v7, v8, vcc")
    if second:
        se(f"v_subrev_u32 v4, 168, v3")
        se(f"v_mul_u32_u24 v8, 37, v4")
        se(f"v_lshrrev_b32 v8, 8, v8")
        se(f"v_mul_u32_u24 v9, 7, v8")
        se(f"v_sub_u32 v9, v4, v9")
        se(f"v_lshrrev_b32 v10, 1, v8")
        se(f"v_lshl_add_u32 v9, v9, 1, v10")
        se(f"v_mul_u32_u24 v9, 224, v9")
        se(f"v_and_b32 v8, 1, v8")
        se(f"v_cmp_le_u32 vcc, 168, v3")
        se(f"v_add3_u32 v9, v9, v8, 6")
        se(f"s_nop 0")
        se(f"v_cndmask_b32 v7, v7, v9, vcc")
    se(f"v_mul_u32_u24 v7, 192, v7")
    se(f"v_add_u32 {v(dst)}, v7, v13")
se(f"s_lshl_b32 s37, {s(sW)}, 5")
se(f"v_add_u32 v3, s37, v2")
se(f"v_mul_u32_u24 v4, {HS}, v3")
se(f"v_add_u32 v4, {HB}, v4")
se(f"v_add_u32 {v(vHRO)}, v4, v12")
pxoff(vGOO, False)
se(f"s_lshr_b32 s37, {s(sW)}, 1")
se(f"s_lshl_b32 s37, s37, 5")
se(f"s_add_u32 s37, s37, 128")
se(f"v_add_u32 v3, s37, v2")
se(f"v_mul_u32_u24 v4, {HS}, v3")
se(f"v_add_u32 v4, {HB}, v4")
se(f"v_add_u32 {v(vHRS)}, v4, v12")
pxoff(vGOS, True)
se(f"v_and_b32 v2, 3, {v(vL)}")
se(f"v_bfe_u32 v3, {v(vL)}, 2, 1")
se(f"v_lshrrev_b32 v4, 4, {v(vL)}")
se(f"v_mul_u32_u24 v7, {448*192}, v2")
se(f"s_lshl_b32 s37, {s(sW)}, 6")
se(f"s_add_u32 s37, s37, s38")
se(f"s_add_u32 s37, s37, {(7*224+7)*192}")
se(f"s_cmp_lt_u32 {s(sW)}, 3")
se(f"s_cselect_b32 s37, s37, {OOB}")
se(f"v_lshl_add_u32 v7, v3, 5, v7")
se(f"v_lshl_add_u32 v7, v4, 3, v7")
se(f"v_add_u32 v7, s37, v7")
se(f"v_and_b32 v8, 8, {v(vL)}")
se(f"v_cmp_eq_u32 vcc, 0, v8")
se(f"v_mov_b32 v9, {OOB}")
se(f"s_nop 0")
se(f"v_cndmask_b32 {v(vGOR)}, v9, v7, vcc")
se(f"v_cmp_eq_u32 vcc, v3, v5")
se(f"v_mul_u32_u24 v7, {HS}, v2")
se(f"v_add_u32 v7, {HB+192*HS}, v7")
se(f"v_add_u32 v7, v7, v12")
se(f"v_mov_b32 v9, {ZB}")
se(f"v_cndmask_b32 {v(vHRR)}, v9, v7, vcc")
se(f"s_lshl_b32 s37, {s(sW)}, 8")
se(f"s_add_u32 s37, s37, {SCR}")
se(f"v_lshl_add_u32 v7, v2, 5, v12")
se(f"v_add_u32 v7, s37, v7")
se(f"v_cndmask_b32 {v(vRSR)}, v9, v7, vcc")
se(f"v_and_b32 v7, 7, {v(vL)}")
se(f"v_lshlrev_b32 v7, 2, v7")
se(f"v_lshl_add_u32 v7, v5, 1, v7")
se(f"v_add_u32 v7, v7, v6")
se(f"v_lshlrev_b32 v7, 3, v7")
se(f"v_add_u32 {v(vRSW)}, s37, v7")
se(f"v_bfe_u32 v7, {v(vL)}, 2, 2")
se(f"v_lshlrev_b32 v7, 6, v7")
se(f"v_lshl_add_u32 v7, v6, 9, v7")
se(f"v_lshl_add_u32 v7, v5, 5, v7")
se(f"v_lshl_add_u32 v7, v2, 3, v7")
for k in range(4):
    se(f"s_xor_b32 s37, {s(sW)}, {k}")
    se(f"s_mul_i32 s37, s37, {CH}")
    se(f"s_sub_u32 s37, {CB0-49152}, s37")
    se(f"v_add_u32 {v(vK+k)}, s37, v7")
se(f"v_lshrrev_b32 v7, 2, {v(vL)}")
se(f"v_and_b32 v8, 3, v7")
se(f"v_lshl_add_u32 v8, v5, 3, v8")
se(f"v_lshl_add_u32 v8, v6, 2, v8")
se(f"v_mul_u32_u24 v7, 768, v7")
se(f"v_mul_u32_u24 v8, 192, v8")
se(f"s_cmp_lt_u32 {s(sW)}, 2")
se(f"s_cselect_b64 vcc, -1, 0")
se(f"s_cselect_b64 {s(SWD,2)}, {s(SW1,2)}, {s(SW2,2)}")
se(f"s_cselect_b32 {s(sDU)}, 64, 6144")
se(f"s_cselect_b32 s37, 12288, 64")
se(f"s_movk_i32 s39, 3072")
se(f"s_cselect_b32 s39, 36864, s39")
se(f"s_mov_b32 {s(SWD+2)}, 73728")
se(f"s_mov_b32 {s(SWD+3)}, 0x00020000")
se(f"v_cndmask_b32 v7, v8, v7, vcc")
se(f"v_lshl_add_u32 {v(vWG)}, v2, 4, v7")
se(f"s_mul_i32 {s(sDO)}, s39, {s(sPAR)}")
se(f"s_add_u32 {s(sDO+1)}, {s(sDO)}, s37")
se(f"s_add_u32 {s(sDO+2)}, {s(sDO+1)}, s37")
se(f"s_mul_i32 {s(sMW)}, {s(sW)}, 3072")
se(f"s_mul_i32 s37, {s(sW)}, {EXW}")
se(f"s_add_u32 s37, s37, {EXB}")
se(f"v_add_u32 {v(vEXW)}, s37, {v(vLIN)}")
se(f"s_mov_b32 {s(sK)}, {f2u(KK):#x}");  se(f"s_mov_b32 {s(sK+1)}, {f2u(KK):#x}")
se(f"s_mov_b32 {s(sSC)}, {f2u(SC):#x}");  se(f"s_mov_b32 {s(sSC+1)}, {f2u(SC):#x}")
se(f"s_mov_b32 {s(sMASKHI)}, 0xffff0000")
pre = []
for c in list(range(8, 24)) + list(range(8)):
    for sidx in range(4):
        for G in range(2):
            pre.append(f"ds_read_b64 {Areg(c, 4*sidx+2*G, 2)}, {v(vAA+2*sidx+G)} offset:{TS*c}")
si = 0
for k, x in enumerate(pre):
    e(x)
    want = (len(setup)*(k+1))//len(pre)
    while si < want:
        e(setup[si]); si += 1
assert si == len(setup)
e("s_waitcnt lgkmcnt(0)")
stamp('preload')
e("s_barrier")
dma_count = [0]
def dma(u, t):
    dma_count[0] += 1
    return [f"s_add_u32 m0, {s(sMW)}, {CB0-CH*u+1024*t}",
            f"s_nop 0",
            f"buffer_load_dwordx4 {v(vWG)}, {s(SWD,4)}, {s(sDO+t)} offen lds",
            f"s_add_u32 {s(sDO+t)}, {s(sDO+t)}, {s(sDU)}"]
for u in range(5):
    for t in range(3):
        for x in dma(u, t): e(x)
stamp('dma')
NE = 15
extra = 0
for t in range(5):
    e(f"s_mov_b64 exec, {s(sEX60,2)}")
    e(f"s_waitcnt vmcnt({NE + extra + 4*(4-t)})")
    if t == 4: stamp('row4')
    base = XS + 16*t
    for d in range(4):
        for hl in range(2):
            ee = 2*d + hl
            sel = s(sSELH) if hl else s(sSELL)
            p = PT + 2*(ee % 4)
            e(f"v_perm_b32 {v(p)}, {v(base+4+d)}, {v(base+d)}, {sel}")
            e(f"v_perm_b32 {v(p+1)}, {v(base+12+d)}, {v(base+8+d)}, {sel}")
            e(f"ds_write_b64 {v(vXW)}, {v(p,2)} offset:{960*ee+48*t}")
    e(f"s_mov_b64 exec, -1")
    if t == 0:
        e(f"s_lshl_b32 s36, {s(sPAR)}, 5")
        e(f"s_xor_b32 s37, s36, 32")
        for i in range(4):
            e(f"buffer_load_dwordx4 {v(XO+4*i,4)}, {v(vGOO)}, {s(SX,4)}, {'s37' if i & 1 else 's36'} offen offset:{64*(i>>1)}")
        extra += 4
    if t == 1:
        for i in range(4, 6):
            e(f"buffer_load_dwordx4 {v(XO+4*i,4)}, {v(vGOO)}, {s(SX,4)}, {'s37' if i & 1 else 's36'} offen offset:{64*(i>>1)}")
        for i in range(2):
            e(f"buffer_load_dwordx4 {v(XSH+4*i,4)}, {v(vGOS)}, {s(SX,4)}, s36 offen offset:{64*i}")
        extra += 4
    if t == 2:
        e(f"buffer_load_dwordx4 {v(XSH+8,4)}, {v(vGOS)}, {s(SX,4)}, s36 offen offset:128")
        e(f"buffer_load_dwordx2 {v(vXRR,2)}, {v(vGOR)}, {s(SX,4)}, 0 offen")
        extra += 2
        e(f"v_and_b32 v2, 31, {v(vL)}")
        e(f"v_lshrrev_b32 v3, 5, {v(vL)}")
        e(f"v_lshlrev_b32 v3, 3, v3")
        e(f"v_sub_u32 v2, v2, v3")
        e(f"v_and_b32 v3, 1, v2")
        e(f"v_lshlrev_b32 v3, 4, v3")
        e(f"v_mov_b32 v4, 0x3f80")
        e(f"v_lshlrev_b32 v3, v3, v4")
        e(f"v_ashrrev_i32 v2, 1, v2")
        e(f"s_lshl_b32 s38, {s(sPAR)}, 3")
        e(f"s_xor_b32 s39, s38, 8")
        e(f"v_mov_b32 v4, 0")
        for (dst, so) in ((IA, 's38'), (IB, 's39')):
            e(f"v_subrev_u32 v5, {so}, v2")
            for j in range(4):
                e(f"v_cmp_eq_u32 {s(32+2*(j&1),2)}, {j}, v5")
                if j & 1:
                    nop(1)
                    e(f"v_cndmask_b32 {v(dst+j-1)}, v4, v3, {s(32,2)}")
                    e(f"v_cndmask_b32 {v(dst+j)}, v4, v3, {s(34,2)}")
e("s_waitcnt lgkmcnt(0)")
e("s_barrier")
stamp('bar1')
def bread(c, sidx):
    return f"ds_read_b128 {v(BBUF[c%3]+4*sidx,4)}, {v(vBA)} offset:{960*c+16*(c>>3)+48*(sidx&1)+192*(sidx>>1)}"
for c in range(2):
    for sidx in range(4): e(bread(c, sidx))
for i in range(8): e(f"v_mov_b32 {v(ST+i)}, 0")
def stats(cl, r):
    d = Dreg(cl) + r
    return [f"v_add_f32 {v(ST+r)}, {v(ST+r)}, {v(d)}", f"v_fmac_f32 {v(ST+4+r)}, {v(d)}, {v(d)}"]
for c in range(24):
    for sidx in range(4):
        later = min(7, 4*24 - 1 - (4*c+sidx))
        e(f"s_waitcnt lgkmcnt({later})")
        d = v(Dreg(c), 4)
        e(f"v_mfma_f32_16x16x32_bf16 {d}, {Areg(c,4*sidx,4)}, {v(BBUF[c%3]+4*sidx,4)}, {'0' if sidx == 0 else d}")
        if c + 2 < 24: e(bread(c+2, sidx))
        if c >= 2:
            for x in stats(c-2, sidx): e(x)
for cl in (22, 23):
    if cl == 23: nop(4)
    for r in range(4):
        for x in stats(cl, r): e(x)
stamp('conv')
e(f"ds_write_b128 {v(vSW)}, {v(ST,4)}")
e(f"ds_write_b128 {v(vSW)}, {v(ST+4,4)} offset:1024")
e(f"s_mov_b32 s36, {f2u(1/96):#x}")
e(f"s_mov_b32 s37, {f2u(1e-5):#x}")
e(f"s_waitcnt vmcnt({extra}) lgkmcnt(0)")
e("s_barrier")
for w in range(4):
    e(f"ds_read_b128 {v(SR+8*w,4)}, {v(vLIN)} offset:{2048*w}")
    e(f"ds_read_b128 {v(SR+8*w+4,4)}, {v(vLIN)} offset:{2048*w+1024}")
def fread(which, tau, f):
    G = tau >> 2
    goff = {0: 49152, 1: 0, 2: 0}[G]
    base = (aF1, aF2)[which] + 4*f
    return [f"ds_read_b64_tr_b16 {a(base+2*q,2)}, {v(vK+(tau&3))} offset:{goff+6144*which+1024*f+256*q}" for q in range(2)]
mid = [dma(u, t) for u in range(5, 9) for t in range(3)]
for k in range(3):
    for x in mid[k]: e(x)
for f in range(6):
    for x in fread(0, 0, f): e(x)
def pk(op, d, *srcs, mod=""):
    e(f"v_pk_{op}_f32 {v(d,2)}, " + ", ".join(srcs) + mod)
e("s_waitcnt lgkmcnt(12)")
for k in range(0, 8, 2):
    pk("add", SR+k, v(SR+k,2), v(SR+8+k,2))
    pk("add", SR+16+k, v(SR+16+k,2), v(SR+24+k,2))
for k in range(0, 8, 2):
    pk("add", SR+k, v(SR+k,2), v(SR+16+k,2))
LA, LB, VV = SR+8, SR+12, SR+16
for r in range(4):
    e(f"v_mul_f32 {v(SR+r)}, s36, {v(SR+r)}")
for r in range(4):
    e(f"v_mul_f32 {v(VV+r)}, {v(SR+r)}, {v(SR+r)}")
for r in range(4):
    e(f"v_fma_f32 {v(VV+r)}, {v(SR+4+r)}, s36, -{v(VV+r)}")
for r in range(4):
    e(f"v_max_f32 {v(VV+r)}, 0, {v(VV+r)}")
for r in range(4):
    e(f"v_add_f32 {v(VV+r)}, s37, {v(VV+r)}")
for r in range(4):
    e(f"v_rsq_f32 {v(VV+r)}, {v(VV+r)}")
for f in range(6):
    for x in fread(1, 0, f): e(x)
for r in range(4):
    e(f"v_mul_f32 {v(LA+r)}, {s(sSC)}, {v(VV+r)}")
for r in range(4):
    e(f"v_mul_f32 {v(LB+r)}, -{v(SR+r)}, {v(LA+r)}")
mi = 3
for o in range(3):
    for c in range(8*o, 8*o+8):
        for h in range(2):
            pk("fma", Dreg(c)+2*h, v(Dreg(c)+2*h,2), v(LA+2*h,2), v(LB+2*h,2))
    for r in range(4):
        for d in range(4):
            c = 8*o + 2*d
            e(f"v_cvt_pk_bf16_f32 {v(PKD+12*r+4*o+d)}, {v(Dreg(c)+r)}, {v(Dreg(c+1)+r)}")
        e(f"ds_write_b128 {v(vHW+r)}, {v(PKD+12*r+4*o,4)} offset:{16*o}")
        if r & 1:
            for x in mid[mi]: e(x)
            mi += 1
stamp('hw')
e(f"s_waitcnt vmcnt({mi})")
for cb in range(3):
    e(f"v_mfma_f32_32x32x16_bf16 {v(ACC['S']+16*cb,16)}, {v(IA,4)}, {v(XSH+4*cb,4)}, 0")
    for x in mid[mi]: e(x)
    mi += 1
assert mi == 12
for cb in range(3):
    e(f"v_mfma_f32_32x32x16_bf16 {v(ACC['O']+16*cb,16)}, {v(IA,4)}, {v(XO+8*cb,4)}, 0")
e("s_waitcnt lgkmcnt(0)")
e("s_barrier")
if 'dumpH' in DUMP: dump_lds(HB, 41808, 2, t0=144)
for ks in range(6):
    e(f"ds_read_b128 {a(aH['S']+4*ks,4)}, {v(vHRS)} offset:{32*ks}")
for cb in range(3):
    e(f"v_mfma_f32_32x32x16_bf16 {v(ACC['O']+16*cb,16)}, {v(IB,4)}, {v(XO+8*cb+4,4)}, {v(ACC['O']+16*cb,16)}")
    for ks in range(2*cb, 2*cb+2):
        e(f"ds_read_b128 {a(aH['O']+4*ks,4)}, {v(vHRO)} offset:{32*ks}")
for ks in range(6):
    e(f"ds_read_b128 {a(aHR+4*ks,4)}, {v(vHRR)} offset:{32*ks}")
stamp('prefill')
SEQ = [('S',0),('O',0),('O',1),('S',2),('O',2),('O',3),('S',4),('O',4),('O',5),('S',6),('O',6),('O',7),
       ('S',8),('O',8),('S',10),('O',10),('O',9),('O',11)]
NU = len(SEQ)
def g1(n):
    blk, tau = SEQ[n]; zb = Z[n % 3]
    out = []
    for ks in range(6):
        post = []
        if n+1 < NU and SEQ[n+1][1] != tau: post = fread(0, SEQ[n+1][1], ks)
        out.append((f"v_mfma_f32_32x32x16_bf16 {v(zb,16)}, {a(aF1+4*ks,4)}, {a(aH[blk]+4*ks,4)}, {'0' if ks == 0 else v(zb,16)}", post, 32))
    return out
def g2(n):
    blk, tau = SEQ[n]
    out = []
    for kk in range(2):
        for cb in range(3):
            post = []
            if n+1 < NU and SEQ[n+1][1] != tau: post = fread(1, SEQ[n+1][1], 3*kk+cb)
            ac = v(ACC[blk]+16*cb, 16)
            out.append((f"v_mfma_f32_32x32x16_bf16 {ac}, {a(aF2+4*(3*kk+cb),4)}, {v(Y+4*kk,4)}, {ac}", post, 32))
    return out
def g1r():
    return [(f"v_mfma_f32_16x16x32_bf16 {v(ZR,4)}, {a(aF1+4*ks,4)}, {a(aHR+4*ks,4)}, {'0' if ks == 0 else v(ZR,4)}", [], 16) for ks in range(6)]
def g2r(first):
    return [(f"v_mfma_f32_16x16x32_bf16 {a(aCR+4*cb,4)}, {a(aF2+4*(3*kk+cb),4)}, {a(aBR+4*kk,4)}, {'0' if (first and kk == 0) else a(aCR+4*cb,4)}", [], 16)
            for kk in range(2) for cb in range(3)]
def fmul(zb, tb, n=8): return [f"v_pk_mul_f32 {v(tb+2*i,2)}, {v(zb+2*i,2)}, {v(tb+2*i,2)}" for i in range(n)]
def cvts(tb, yb, n=8): return [f"v_cvt_pk_bf16_f32 {v(yb+i)}, {v(tb+2*i)}, {v(tb+2*i+1)}" for i in range(n)]
def add1(tb, n=8): return [f"v_pk_fma_f32 {v(tb+2*i,2)}, {v(tb+2*i,2)}, {s(sSC,2)}, {s(sSC,2)}" for i in range(n)]
def poly(zb, tb, n=8):
    o = [f"v_pk_fma_f32 {v(tb+2*i,2)}, {v(zb+2*i,2)}, {v(zb+2*i,2)}, {s(sK,2)}" for i in range(n)]
    o += [f"v_pk_mul_f32 {v(tb+2*i,2)}, {v(zb+2*i,2)}, {v(tb+2*i,2)} neg_lo:[1,0] neg_hi:[1,0]" for i in range(n)]
    return o
def rcps(tb, n=16): return [f"v_rcp_f32 {v(tb+i)}, {v(tb+i)}" for i in range(n)]
def exps(tb, n=16): return [f"v_exp_f32 {v(tb+i)}, {v(tb+i)}" for i in range(n)]
def cost(x):
    if isinstance(x, (list, tuple)): return sum(cost(y) for y in x)
    op = x.split()[0]
    if op in ('v_rcp_f32', 'v_exp_f32'): return 8
    if op.startswith('ds_write'): return 12
    if op.startswith('buffer'): return 16
    return 4
def mphase(mf, fill):
    total = sum(cost(x) for x in fill)
    room = sum(m[2]-8 for m in mf)
    fi = 0; used = 0; acc = 0
    for k, (m, post, cyc) in enumerate(mf):
        e(m)
        for x in post: e(x)
        acc += cyc - 8
        target = total*acc/room
        while fi < len(fill) and (used + cost(fill[fi])/2 <= target or k == len(mf)-1):
            it = fill[fi]
            for y in (it if isinstance(it, (list, tuple)) else [it]): e(y)
            used += cost(it); fi += 1

e("s_waitcnt lgkmcnt(12)")
for (m, post, _) in g1(0): e(m)
e("s_waitcnt lgkmcnt(0)")
for (m, post, _) in g1r(): e(m)
for (m, post, _) in g1(1):
    e(m)
    for x in post: e(x)
for x in poly(Z[0], TT[0]) + poly(ZR, TR_, 2): e(x)
for x in exps(TT[0]) + exps(TR_, 4): e(x)
stamp('fill')

R_G1 = {4, 10}
R_POLY = {5, 11}; R_EXP = {5, 11}; R_ADD = {0, 6, 12}; R_RCP = {0, 6, 12}
R_FIN = {1, 7, 13}; R_G2 = {2: True, 8: False, 14: False}
REBASE = {9: (0, 1), 10: (2,), 12: (3,)}
late = [dma(u, t) for u in range(9, 12) for t in range(3)]
RECV = 48; RREC = 96; SP = 80; OP = 112
def spread(base, items):
    if not items: return base
    out = []; n = len(items)
    step = len(base)/n
    k = 0
    for i, x in enumerate(base):
        out.append(x)
        while k < n and (i+1) >= step*(k+0.5):
            out.append(items[k]); k += 1
    out += items[k:]
    return out
def check_order(lo, hi):
    from asmlib import Ins
    ins = [Ins(x) for x in L[lo:hi]]
    for i, c in enumerate(ins):
        if c.kind == 'mfma':
            for j in range(i+1, len(ins)):
                if ins[j].kind == 'valu' and set(ins[j].w) & (set(c.b)):
                    raise Exception("order problem: " + c.text + " / " + ins[j].text)
for m in range(0, NU+1):
    P = []
    if m-1 >= 0: P += fmul(Z[(m-1) % 3], TT[(m-1) % 3])
    if m < NU: P += add1(TT[m % 3])
    if m+1 < NU: P += poly(Z[(m+1) % 3], TT[(m+1) % 3])
    if m in R_POLY: P += poly(ZR, TR_, 2)
    if m in R_ADD: P += add1(TR_, 2)
    if m in R_FIN: P += fmul(ZR, TR_, 2)
    cv = cvts(TT[(m-1) % 3], Y) if m-1 >= 0 else []
    if m in R_FIN: cv = cv + cvts(TR_, 2, 2)
    has_g1 = m+2 < NU
    if not (CVT_IN_M and has_g1):
        P += cv; cv = []
    if m == 3 or m == 9:
        e("s_waitcnt vmcnt(0)")
        e("s_barrier")
    for k in REBASE.get(m, ()):
        P.append(f"v_subrev_u32 {v(vK+k)}, 49152, {v(vK+k)}")
    if m == 16:
        P.append(f"s_xor_b32 s36, {s(sW)}, 1")
        P.append(f"s_mul_i32 s36, s36, {EXW}")
        P.append(f"s_add_u32 s36, s36, {EXB}")
        P.append(f"v_add_u32 v4, s36, {v(vLIN)}")
        P.append(f"s_min_u32 s36, {s(sW)}, 2")
        P.append(f"s_lshl_b32 s36, s36, 10")
        P.append(f"s_add_u32 s36, s36, {EXB+6144}")
        P.append(f"v_add_u32 v5, s36, {v(vLIN)}")
        P.append(f"s_mul_i32 s38, {s(sPAR)}, 96")
    for x in P: e(x)
    if m == 17:
        e("s_waitcnt lgkmcnt(0)")
        e("s_barrier")
    if m == 18:
        e("s_waitcnt lgkmcnt(0)")
        e(f"s_cmp_eq_u32 {s(sPAR)}, 1")
        e(f"s_cbranch_scc1 L_add1")
        for i in range(12): pk("add", RECV+2*i, v(RECV+2*i,2), v(ACC['S']+2*i,2))
        e(f"s_branch L_add2")
        lab("L_add1")
        for i in range(12): pk("add", RECV+2*i, v(RECV+2*i,2), v(ACC['S']+24+2*i,2))
        lab("L_add2")
        for h in range(2):
            pk("add", RREC+2*h, v(RREC+2*h,2), v(RREC+4+2*h,2))
            pk("add", RREC+8+2*h, v(RREC+8+2*h,2), v(RREC+12+2*h,2))
            e(f"v_lshlrev_b32 {v(RREC+4+2*h)}, 16, {v(vXRR+h)}")
            e(f"v_and_b32 {v(RREC+5+2*h)}, {s(sMASKHI)}, {v(vXRR+h)}")
        for h in range(2):
            pk("add", RREC+2*h, v(RREC+2*h,2), v(RREC+8+2*h,2))
        for h in range(2):
            pk("add", RREC+2*h, v(RREC+2*h,2), v(RREC+4+2*h,2))
    mf = []
    if m in R_G1: mf += g1r()
    if has_g1: mf += g1(m+2)
    if m in R_G2: mf += g2r(R_G2[m])
    if m-1 >= 0: mf += g2(m-1)
    tr = []
    if m < NU: tr += rcps(TT[m % 3])
    if m in R_RCP: tr += rcps(TR_, 4)
    if m+1 < NU: tr += exps(TT[(m+1) % 3])
    if m in R_EXP: tr += exps(TR_, 4)
    fill = []
    k = 0
    for x in cv:
        fill.append(x)
        fill += tr[k:k+1]; k += 1
    if m in R_FIN:
        fill += [[f"s_mov_b64 exec, {s(sEXR,2)}", f"ds_write_b64 {v(vRSW)}, v[2:3]", "s_mov_b64 exec, -1"],
                 f"ds_read_b128 {a(aBR,4)}, {v(vRSR)}", f"ds_read_b128 {a(aBR+4,4)}, {v(vRSR)} offset:128"]
    rest = tr[k:]
    if m in (3, 4, 5): rest = spread(rest, late[3*(m-3):3*(m-3)+3])
    if m == 17:
        rd = [f"ds_read_b128 {v(RECV+4*i,4)}, v4 offset:{1024*i}" for i in range(6)]
        rd += [f"ds_read_b128 {v(RREC+4*i,4)}, v5 offset:{EXW*i}" for i in range(4)]
        rest = spread(rest, rd)
    if m == 18:
        for g in range(3):
            rest += cvts(RECV+8*g, SP+4*g, 4)
            rest += [f"v_cvt_pk_bf16_f32 {v(2+g)}, {v(RREC+2*g)}, {v(RREC+2*g+1)}" if g < 2 else f"buffer_store_dwordx2 v[2:3], {v(vGOR)}, {s(SO,4)}, 0 offen"]
            rest += ["s_nop 0"]
            rest += [f"v_permlane32_swap_b32 {v(SP+4*g)}, {v(SP+4*g+2)}", f"v_permlane32_swap_b32 {v(SP+4*g+1)}, {v(SP+4*g+3)}"]
            rest += [f"buffer_store_dwordx4 {v(SP+4*g,4)}, {v(vGOS)}, {s(SO,4)}, s38 offen offset:{32*g}"]
    if m != 17 and m != 18: e("s_waitcnt lgkmcnt(0)")
    L.append(f"    ; ---- M{m}")
    lo = len(L)
    if m == 16:
        e(f"s_cmp_eq_u32 {s(sPAR)}, 1")
        e(f"s_cbranch_scc1 L_m16b")
        for par in range(2):
            snd = [f"ds_write_b128 {v(vEXW)}, {v(ACC['S']+24*(1-par)+4*i,4)} offset:{1024*i}" for i in range(6)]
            snd += [f"ds_write_b128 {v(vEXW)}, {a(aCR+4*i,4)} offset:{6144+1024*i}" for i in range(3)]
            if par == 1: lab("L_m16b")
            mphase(mf, fill + spread(rest, snd))
            if par == 0: e("s_branch L_m16e")
        lab("L_m16e")
    else:
        mphase(mf, fill + rest)
    check_order(lo, len(L))
    stamp(f"m{m}")
nop(4)
for g in range(6):
    for x in cvts(ACC['O']+8*g, OP+4*g, 4): e(x)
    if g > 0:
        gg = g-1
        e(f"v_permlane32_swap_b32 {v(OP+4*gg)}, {v(OP+4*gg+2)}")
        e(f"v_permlane32_swap_b32 {v(OP+4*gg+1)}, {v(OP+4*gg+3)}")
        e(f"buffer_store_dwordx4 {v(OP+4*gg,4)}, {v(vGOO)}, {s(SO,4)}, 0 offen offset:{32*gg}")
gg = 5
nop(2)
e(f"v_permlane32_swap_b32 {v(OP+4*gg)}, {v(OP+4*gg+2)}")
e(f"v_permlane32_swap_b32 {v(OP+4*gg+1)}, {v(OP+4*gg+3)}")
e(f"buffer_store_dwordx4 {v(OP+4*gg,4)}, {v(vGOO)}, {s(SO,4)}, 0 offen offset:{32*gg}")
if DEBUG_STAMPS:
    e("s_waitcnt vmcnt(0)")
    stamp('end')
    e("s_memrealtime s[38:39]")
    e("s_waitcnt lgkmcnt(0)")
    e(f"s_cmp_lg_u32 {s(sW)}, 0")
    e(f"s_cbranch_scc1 L_end")
    e(f"s_mov_b64 exec, 1")
    e(f"v_mov_b32 v3, 0")
    if 'span' in ARGS:
        e(f"s_not_b32 s36, s100")
        e(f"v_mov_b32 v2, s36")
        e(f"v_mov_b32 v4, s38")
        e(f"buffer_atomic_umax v2, v3, {s(SDBG,4)}, 0 offen offset:56")
        e(f"buffer_atomic_umax v4, v3, {s(SDBG,4)}, 0 offen offset:60")
        e(f"v_mov_b32 v5, s100")
        e(f"buffer_atomic_umax v5, v3, {s(SDBG,4)}, 0 offen offset:52")
        e("s_waitcnt vmcnt(0)")
    e(f"s_cmp_lg_u32 s2, 100")
    e(f"s_cbranch_scc1 L_end")
    e(f"s_sub_u32 s36, s38, s100")
    e(f"v_mov_b32 v2, s36")
    e(f"buffer_store_dword v2, v3, {s(SDBG,4)}, 0 offen offset:48")
    for i in range(1, nstamp[0]):
        e(f"s_sub_u32 s36, {s(sSTAMP+2*i)}, {s(sSTAMP)}")
        e(f"v_mov_b32 v2, s36")
        e(f"buffer_store_dword v2, v3, {s(SDBG,4)}, 0 offen offset:{4*(i-1)}")
    e("s_waitcnt vmcnt(0)")

probs = check_hazards(L, "all")
seen = set()
for p in probs:
    if p not in seen: print(p); seen.add(p)
open(OUTF, 'w').write(header() + "\n".join(L) + "\n" + footer())
print("lines", len(L), "stamps", nstamp[0], "dma", dma_count[0])
```

```python
import re

TRANS = ("v_exp_f32","v_rcp_f32","v_rsq_f32","v_log_f32","v_sqrt_f32","v_sin_f32","v_cos_f32","v_exp_f16","v_rcp_f16")

def parse_regs(tok):
    tok = tok.strip()
    tok = tok.lstrip('-').strip('|')
    m = re.fullmatch(r'([vas])\[(\d+):(\d+)\]', tok)
    if m:
        return [(m.group(1), i) for i in range(int(m.group(2)), int(m.group(3))+1)]
    m = re.fullmatch(r'([vas])(\d+)', tok)
    if m:
        return [(m.group(1), int(m.group(2)))]
    if tok == 'vcc': return [('s', 106), ('s', 107)]
    if tok == 'exec': return [('s', 126), ('s', 127)]
    if tok == 'm0': return [('s', 124)]
    return []

class Ins:
    def __init__(self, text):
        self.text = text
        t = text.split(';')[0].strip()
        self.label = t.endswith(':')
        parts = t.split(None, 1)
        self.op = parts[0] if parts else ''
        rest = parts[1] if len(parts) > 1 else ''
        ops = [o.strip() for o in rest.split(',')] if rest else []
        clean = []
        for o in ops:
            clean.append(o.split()[0] if o.split() else o)
        self.ops = clean
        self.rest = rest
        op = self.op
        self.kind = 'other'
        self.w = []; self.r = []
        if op.startswith('v_mfma'):
            self.kind = 'mfma'
            self.passes = 8 if '32x32x16' in op else 4
            self.w = parse_regs(clean[0]); self.a = parse_regs(clean[1]); self.b = parse_regs(clean[2]); self.c = parse_regs(clean[3])
            self.r = self.a + self.b + self.c
        elif op.startswith('ds_read') or op.startswith('ds_bpermute') or op.startswith('ds_permute') or op.startswith('ds_swizzle'):
            self.kind = 'ds'; self.w = parse_regs(clean[0]); self.r = sum((parse_regs(o) for o in clean[1:]), [])
        elif op.startswith('ds_'):
            self.kind = 'ds'; self.r = sum((parse_regs(o) for o in clean), [])
        elif op.startswith('buffer_load') or op.startswith('global_load'):
            self.kind = 'vmem'
            if ' lds' in (' '+rest):
                self.r = sum((parse_regs(o) for o in clean), []) + [('s',124)]
            else:
                self.w = parse_regs(clean[0]); self.r = sum((parse_regs(o) for o in clean[1:]), [])
        elif op.startswith('buffer_store') or op.startswith('global_store'):
            self.kind = 'vmem'; self.store = True; self.r = sum((parse_regs(o) for o in clean), [])
            self.data = parse_regs(clean[0]) if op.startswith('buffer') else parse_regs(clean[1])
        elif op.startswith('v_'):
            self.kind = 'valu'
            if op.startswith('v_permlane') and 'swap' in op:
                self.w = parse_regs(clean[0]) + parse_regs(clean[1]); self.r = list(self.w)
            elif op.startswith('v_cmp'):
                self.w = parse_regs(clean[0]); self.r = sum((parse_regs(o) for o in clean[1:]), [])
            elif op == 'v_nop':
                pass
            else:
                self.w = parse_regs(clean[0]); self.r = sum((parse_regs(o) for o in clean[1:]), [])
                if op.startswith('v_cndmask') and len(clean) == 3: self.r += parse_regs('vcc')
                if op.startswith('v_fmac') or op.startswith('v_dot2c') or op.startswith('v_mac'): self.r += self.w
                if '_co_' in op:
                    self.w += parse_regs(clean[1])
        elif op.startswith('s_'):
            self.kind = 'salu'
            if op in ('s_nop','s_waitcnt','s_barrier','s_endpgm','s_branch','s_setprio','s_sleep') or op.startswith('s_cbranch') or op.startswith('s_cmp'):
                self.r = sum((parse_regs(o) for o in clean), []) if op.startswith('s_cmp') else []
            else:
                self.w = parse_regs(clean[0]) if clean else []
                self.r = sum((parse_regs(o) for o in clean[1:]), [])
                if 'saveexec' in op: self.w += parse_regs('exec')
        self.ws = 1
        if op == 's_nop': self.ws = int(clean[0]) + 1
        if self.label or op == '' or op.startswith('.') : self.ws = 0

def check_hazards(lines, name=""):
    ins = [Ins(l) for l in lines]
    ins = [i for i in ins if i.ws > 0]
    probs = []
    n = len(ins)
    iss = [0]*(n+1); t = 0; mfree = 0
    for k in range(n):
        if ins[k].kind == 'mfma':
            t = max(t, mfree); mfree = t + ins[k].passes
        iss[k] = t
        t += ins[k].ws
    def dist(i, j):
        return iss[j] - iss[i] - ins[i].ws
    for j in range(n):
        c = ins[j]
        lo = max(0, j-24)
        for i in range(j-1, lo-1, -1):
            p = ins[i]
            d = dist(i, j)
            if d >= 20: break
            pw = set(p.w); cr = set(c.r); cw = set(c.w)
            def need(k, why):
                if d < k: probs.append(f"{name}: need {k} ws have {d}: [{p.text.strip()}] -> [{c.text.strip()}] ({why})")
            if p.kind == 'valu':
                vw = {x for x in pw if x[0] in 'va'}; sw = {x for x in pw if x[0] == 's'}
                if c.kind == 'mfma' and vw & cr: need(2, "valu->mfma")
                if c.kind == 'valu':
                    if p.op in TRANS and c.op not in TRANS and vw & cr: need(1, "trans->valu")
                    if c.op.startswith('v_permlane') and vw & cr: need(2, "valu->permlane")
                    if (c.op.startswith('v_readfirstlane') or c.op.startswith('v_readlane')) and vw & cr: need(1, "valu->readlane")
                    if ('dpp' in c.rest or 'row_' in c.rest or 'quad_perm' in c.rest) and vw & cr: need(2, "valu->dpp")
                    if sw & cr: need(2, "valu sgpr->valu read")
                    if 'sdwa' in p.op or 'op_sel' in p.rest and not p.op.startswith('v_pk'):
                        if vw & (cr|cw): need(1, "opsel")
                if c.kind == 'vmem' and sw & cr: need(5, "valu sgpr->vmem")
                if p.op in TRANS and c.kind in ('mfma',) and vw & cr: need(2, "trans->mfma")
                if p.op.startswith('v_dot') and c.kind in ('valu','mfma','ds','vmem') and vw & (cr|cw) and not (c.op == p.op and not (vw & set(sum((parse_regs(o) for o in c.ops[1:3]), [])))):
                    need(3, "dot->use")
            if p.kind == 'mfma':
                big = 12 if p.passes == 8 else 8
                if c.kind == 'mfma':
                    if pw & (set(c.a) | set(c.b)): need(big, "mfma D->A/B")
                    if pw & set(c.c) and (c.c != p.w or c.passes != p.passes): need(10 if p.passes == 8 else 6, "mfma D->C overlap")
                    if pw & cw and not (pw & set(c.c)) : need(big, "mfma D WAW (conservative)")
                elif c.kind in ('valu', 'ds', 'vmem'):
                    if pw & (cr | cw): need(big, "mfma D->use")
                if c.kind == 'valu' and set(p.c) & cw: need(7 if p.passes == 8 else 3, "mfma C WAR")
            if p.kind == 'vmem' and getattr(p, 'store', False) and len(p.data) >= 3:
                if set(p.data) & cw: need(2 if c.kind == 'valu' else 1, "store data WAR")
            if p.kind == 'salu' and ('s',124) in pw and c.kind == 'vmem' and ('s',124) in cr: need(1, "m0->lds dma")
            if p.kind == 'valu' and (('s',126) in pw) and c.kind == 'mfma': need(4, "valu exec->mfma")
    return probs


def paths(lines):
    out = [[], []]
    state = None
    for l in lines:
        t = l.split(';')[0].strip()
        if state is None:
            out[0].append(l); out[1].append(l)
            m = re.fullmatch(r's_cbranch_scc1 (L_\w+)', t)
            if m and m.group(1) != 'L_end': state = ('then', m.group(1))
        elif state[0] == 'then':
            if t == state[1] + ':':
                state = ('else', endl)
                continue
            out[0].append(l)
            m = re.fullmatch(r's_branch (L_\w+)', t)
            if m: endl = m.group(1)
        else:
            if t == state[1] + ':':
                state = None; continue
            out[1].append(l)
    return out
```

```python
import math, struct, sys
from asmlib import check_hazards, Ins, paths

ARGS = sys.argv[1:]
DEBUG_STAMPS = 'stamp' in ARGS
DUMP = [x for x in ARGS if x.startswith('dump')]
OUTF = [x[4:] for x in ARGS if x.startswith('out=')]
OUTF = OUTF[0] if OUTF else 'standalone__convnext_block__vision.s'
OPT = dict(x.split('=') for x in ARGS if '=' in x and not x.startswith('out='))
CVT_IN_M = int(OPT.get('cvtm', 1))
PREF = int(OPT.get('pref', 1))
TOUCH = int(OPT.get('touch', 1))
EARLY = int(OPT.get('early', 1))
SEQN = int(OPT.get('seq', 1))

def f2u(x): return struct.unpack('<I', struct.pack('<f', x))[0]
C1 = 2*math.sqrt(2/math.pi)*math.log2(math.e)
C3 = C1*0.044715
SC = C3**(1/3)
KK = C1/SC

STB = 0; SCR = 8192; ZB = 9216
XB = 9408
TB = XB + 92352; TS = 568; TW = 8*TS
DWHI = TB + 4*TW
DWSZ = 3504
assert DWHI + 2*DWSZ <= 126976
HB = XB; HS = 208
CB0 = 151552; CH = 12288
EXB = 114688; EXW = 9216
LDS_TOTAL = 163840
OOB = 0x40000000

L = []
def e(s): L.append("    " + s)
def lab(s): L.append(s + ":")
def nop(n): e(f"s_nop {n-1}")
def v(i, n=1): return f"v{i}" if n == 1 else f"v[{i}:{i+n-1}]"
def a(i, n=1): return f"a{i}" if n == 1 else f"a[{i}:{i+n-1}]"
def s(i, n=1): return f"s{i}" if n == 1 else f"s[{i}:{i+n-1}]"
def t(i): return f"v{224+i}"

SX, SDW, SW1, SW2, SO, SDBG, SWS, SWD = 4, 8, 12, 16, 20, 24, 64, 68
sW, sY0, sX0 = 28, 29, 30
sPAR = 31
sK, sSC = 40, 42
sSELL, sSELH = 46, 47
sROW = 48
sEX60, sEX49, sEX48, sEX24, sEXR = 54, 56, 58, 60, 44
sDBW = 62
sMW = 63
sDO = 72
sDU = 75
sMASKHI = 53
sRA, sRB = 3, 66
sSTAMP = 76
nstamp = [0]
SETS = {'A': ['start','ka','issued','dw','preload','row4','bar1','conv','hw','prefill','fill','end'],
        'B': ['start','fill','m0','m3','m6','m9','m12','m15','m17','m18','exch','end'],
        'C': ['start','dw','tr','o1','o2','preload','row0','row2','bar1','conv','st','hw']}
STSET = SETS[OPT.get('st', 'A')]
def stamp(name):
    if DEBUG_STAMPS and name in STSET:
        assert nstamp[0] < 12
        e(f"s_memtime {s(sSTAMP+2*nstamp[0],2)}")
        nstamp[0] += 1

vL = 1
IA, IB = 4, 8
vK2 = 12
vXOFF = 16; vK = 16
vXW, vBA, vLIN, vWG = 20, 21, 22, 23
vHW = 24
vGOO, vGOS, vGOR, vHRO, vHRS, vHRR, vSW, vRSW, vRSR = 28, 29, 30, 31, 32, 33, 34, 35, 36
vEXW = 37
vAA = 38; PT = 38; ST = 38
vEXR1, vEXR2 = 38, 39
vXRR = 46
XS = 48
AV = 128
TRT = 128; DWS = 184
vPADW, vDWG, vDWL, vTS1, vTS2, vTD = 196, 197, 198, 199, 200, 201
MUL = [202, 203]; OFF = [204, 205]
ZZ = 208
BBUF = [96, 112, 128]
def Dreg(c):
    return 48 + 4*c if c < 12 else 160 + 4*(c-12)
def Areg(c, k, n):
    return v(AV+16*c+k, n) if c < 8 else a(16*(c-8)+k, n)
SR = 224
PKD = 96
Z = [48, 64, 80]; TT = [96, 112, 128]; Y = 144; ZR = 152; TR_ = 156
ACC = {'O': 160, 'S': 208}
aF1, aF2, aH, aHR, aBR, aCR = 0, 24, {'O': 48, 'S': 72}, 96, 120, 128
aXO, aXS = 140, 164

def header():
    return f"""; ConvNeXt block (depthwise 7x7 -> LayerNorm -> MLP(GELU) -> residual), gfx950
; @launch grid=(256,1,1) block=(256,1,1) lds={LDS_TOTAL}
.amdgcn_target "amdgcn-amd-amdhsa--gfx950"
.text
.globl standalone__convnext_block__vision_kernel
.p2align 8
.type standalone__convnext_block__vision_kernel,@function
standalone__convnext_block__vision_kernel:
"""
def footer():
    return """L_end:
    s_endpgm
L_code_end:
.section .rodata,"a"
.p2align 6
.amdhsa_kernel standalone__convnext_block__vision_kernel
  .amdhsa_next_free_vgpr 512
  .amdhsa_next_free_sgpr 102
  .amdhsa_accum_offset 256
  .amdhsa_group_segment_fixed_size 0
  .amdhsa_kernarg_size 56
  .amdhsa_user_sgpr_count 2
  .amdhsa_user_sgpr_kernarg_segment_ptr 1
  .amdhsa_system_sgpr_workgroup_id_x 1
.end_amdhsa_kernel
"""
def srd(base, nbytes):
    e(f"s_mov_b32 {s(base+2)}, {nbytes}")
    e(f"s_mov_b32 {s(base+3)}, 0x00020000")

vm = [0]
def vmem(x):
    e(x); vm[0] += 1
    return vm[0]
def vwait(idx, extra=""):
    n = vm[0] - idx
    assert 0 <= n < 64
    e(f"s_waitcnt vmcnt({n})" + extra)

e("s_cmp_ge_u32 s2, 256")
e("s_cbranch_scc1 L_end")
stamp('start')
if DEBUG_STAMPS: e("s_memrealtime s[100:101]")
e(f"s_load_dwordx2 {s(SDW,2)}, s[0:1], 8")
e(f"s_load_dwordx2 {s(SX,2)}, s[0:1], 0")
e(f"s_load_dwordx2 {s(SW1,2)}, s[0:1], 16")
e(f"s_load_dwordx2 {s(SW2,2)}, s[0:1], 24")
e(f"s_load_dwordx2 {s(SO,2)}, s[0:1], 32")
if DEBUG_STAMPS: e(f"s_load_dwordx2 {s(SDBG,2)}, s[0:1], 40")
if PREF:
    e(f"s_getpc_b64 {s(SWD,2)}")
    lab("L_pc")
    e(f"s_mov_b32 {s(SWD+2)}, L_code_end-L_pc")
    e(f"s_mov_b32 {s(SWD+3)}, 0x00020000")
    e(f"v_lshlrev_b32 v2, 7, v0")
    e(f"s_mov_b32 s32, 32768")
    vmem(f"buffer_load_dword {v(vXRR)}, v2, {s(SWD,4)}, 0 offen")
    vmem(f"buffer_load_dword {v(vXRR)}, v2, {s(SWD,4)}, s32 offen")
e(f"v_lshrrev_b32 v2, 6, v0")
e(f"v_and_b32 {v(vL)}, 63, v0")
e(f"v_readfirstlane_b32 {s(sW)}, v2")
e(f"s_and_b32 s32, s2, 7")
e(f"s_lshr_b32 s33, s2, 3")
e(f"s_lshr_b32 s34, s32, 1")
e(f"s_lshl_b32 s34, s34, 2")
e(f"s_lshr_b32 s35, s33, 3")
e(f"s_add_u32 s34, s34, s35")
e(f"s_and_b32 s32, s32, 1")
e(f"s_lshl_b32 s32, s32, 3")
e(f"s_and_b32 s33, s33, 7")
e(f"s_add_u32 s32, s32, s33")
e(f"s_mul_i32 {s(sY0)}, s34, 14")
e(f"s_mul_i32 {s(sX0)}, s32, 14")
srd(SX, 9633792); srd(SDW, 9408)
srd(SW1, 73728); srd(SW2, 73728); srd(SO, 9633792)
if DEBUG_STAMPS: srd(SDBG, 256)
e(f"s_mul_i32 s36, {s(sW)}, 48")
e(f"v_mul_u32_u24 {v(vDWG)}, 192, {v(vL)}")
e(f"v_add_u32 {v(vDWG)}, s36, {v(vDWG)}")
e(f"v_mul_u32_u24 {t(2)}, 43, {v(vL)}")
e(f"v_lshrrev_b32 {t(2)}, 9, {t(2)}")
e(f"v_mul_u32_u24 {t(3)}, 12, {t(2)}")
e(f"v_sub_u32 {t(3)}, {v(vL)}, {t(3)}")
e(f"s_sub_u32 s32, {s(sX0)}, 3")
e(f"v_lshlrev_b32 {t(4)}, 2, {t(2)}")
e(f"v_add_u32 {t(4)}, s32, {t(4)}")
e(f"v_lshlrev_b32 {t(5)}, 4, {t(3)}")
e(f"v_mov_b32 {t(7)}, {OOB}")
e(f"v_cmp_gt_u32 vcc, 60, {v(vL)}")
e(f"s_movk_i32 s33, 224")
e(f"s_movk_i32 s34, 192")
e(f"v_cndmask_b32 {t(4)}, {t(7)}, {t(4)}, vcc")
for j in range(4):
    e(f"v_add_u32 {t(6)}, {j}, {t(4)}")
    e(f"v_cmp_gt_u32 vcc, s33, {t(6)}")
    e(f"v_mad_u32_u24 {t(8)}, {t(6)}, s34, {t(5)}")
    nop(1)
    e(f"v_cndmask_b32 {v(vXOFF+j)}, {t(7)}, {t(8)}, vcc")
e(f"s_mul_i32 s35, {s(sW)}, 5")
e(f"s_add_u32 s35, s35, {s(sY0)}")
e(f"s_sub_u32 s35, s35, 3")
for tt in range(5):
    e(f"s_add_u32 s36, s35, {tt}")
    e(f"s_mul_i32 s37, s36, 43008")
    e(f"s_cmp_lt_u32 s36, 224")
    e(f"s_cselect_b32 {s(sROW+tt)}, s37, {OOB}")
e(f"s_mul_i32 s38, {s(sY0)}, 224")
e(f"s_add_u32 s38, s38, {s(sX0)}")
e(f"s_mul_i32 s38, s38, 192")
if TOUCH:
    e(f"v_mul_u32_u24 v2, 1152, {v(vL)}")
    e(f"v_min_u32 v3, 13, {v(vL)}")
    e(f"v_mul_u32_u24 v3, 43008, v3")
e(f"s_mov_b32 {s(sEX60)}, -1");  e(f"s_mov_b32 {s(sEX60+1)}, 0x0fffffff")
e(f"s_mov_b32 {s(sEX49)}, -1");  e(f"s_mov_b32 {s(sEX49+1)}, 0x0001ffff")
e(f"s_mov_b32 {s(sEX48)}, -1");  e(f"s_mov_b32 {s(sEX48+1)}, 0x0000ffff")
e(f"s_mov_b32 {s(sEX24)}, 0x000000ff");  e(f"s_mov_b32 {s(sEX24+1)}, 0")
e(f"s_mov_b32 {s(sEXR)}, 0x00ff00ff");  e(f"s_mov_b32 {s(sEXR+1)}, 0x00ff00ff")
e(f"s_mov_b32 {s(sSELL)}, 0x05040100")
e(f"s_mov_b32 {s(sSELH)}, 0x07060302")
e(f"s_and_b32 {s(sPAR)}, {s(sW)}, 1")
e(f"s_mul_i32 s36, {s(sW)}, 240")
e(f"s_add_u32 s36, s36, {XB}")
e(f"v_mul_u32_u24 {t(6)}, 7696, {t(3)}")
e(f"v_add_u32 {t(6)}, s36, {t(6)}")
e(f"v_lshl_add_u32 {v(vXW)}, {t(2)}, 3, {t(6)}")
e(f"v_mul_u32_u24 {t(8)}, 48, {t(2)}")
e(f"v_add3_u32 {v(vPADW)}, {t(6)}, {t(8)}, 40")
e(f"s_mul_i32 {s(sDBW)}, {s(sW)}, {DWSZ}")
e(f"s_add_u32 s36, {s(sDBW)}, {DWHI-2*DWSZ}")
e(f"s_cmp_lt_u32 {s(sW)}, 2")
e(f"s_cselect_b32 {s(sDBW)}, {s(sDBW)}, s36")
e(f"v_lshlrev_b32 {v(vLIN)}, 4, {v(vL)}")
e(f"v_add_u32 {t(9)}, {s(sDBW)}, {v(vLIN)}")
e(f"v_min_u32 {t(10)}, 176, {v(vLIN)}")
e(f"s_mul_i32 s36, {s(sW)}, {TW}")
e(f"s_add_u32 s36, s36, {TB}")
e(f"v_mul_u32_u24 {t(11)}, {TS}, {v(vL)}")
e(f"v_add_u32 {t(11)}, s36, {t(11)}")
for i in range(4): e(f"v_mov_b32 {v(ZZ+i)}, 0")
for o in (0, 1024, 2048, DWSZ-1024):
    e(f"ds_write_b128 {t(9)}, {v(ZZ,4)} offset:{o}")
e(f"ds_write_b128 {t(10)}, {v(ZZ,4)} offset:{ZB}")
e(f"s_mov_b64 exec, {s(sEX24,2)}")
e(f"ds_write_b64 {t(11)}, {v(ZZ,2)} offset:448")
e(f"s_mov_b64 exec, {s(sEX60,2)}")
for ee in range(8):
    e(f"ds_write_b64 {v(vPADW)}, {v(ZZ,2)} offset:{960*ee}")
e(f"s_mov_b64 exec, -1")
e(f"v_mul_u32_u24 {t(6)}, 37, {v(vL)}")
e(f"v_lshrrev_b32 {t(6)}, 8, {t(6)}")
e(f"v_mul_u32_u24 {t(6)}, 3, {t(6)}")
e(f"v_add3_u32 {t(6)}, {t(6)}, {v(vL)}, 3")
e(f"v_mul_u32_u24 {t(6)}, 48, {t(6)}")
e(f"v_add_u32 {v(vDWL)}, {s(sDBW)}, {t(6)}")
e(f"v_lshrrev_b32 {t(6)}, 4, {v(vL)}")
e(f"v_bfe_u32 {t(7)}, {v(vL)}, 1, 1")
e(f"v_lshl_add_u32 {t(6)}, {t(6)}, 1, {t(7)}")
e(f"v_bfe_u32 {t(7)}, {v(vL)}, 2, 2")
e(f"v_and_b32 {t(8)}, 1, {v(vL)}")
e(f"v_lshlrev_b32 {t(8)}, 3, {t(8)}")
e(f"v_add_u32 {t(8)}, {s(sDBW)}, {t(8)}")
e(f"v_and_b32 {t(9)}, 4, {t(6)}")
e(f"v_and_b32 {t(10)}, 3, {t(6)}")
e(f"v_sub_u32 {t(9)}, {t(9)}, {t(10)}")
e(f"v_add3_u32 {t(9)}, {t(9)}, {t(7)}, 3")
e(f"v_mul_u32_u24 {t(9)}, 48, {t(9)}")
e(f"v_add_u32 {v(vTS1)}, {t(9)}, {t(8)}")
e(f"v_lshrrev_b32 {t(9)}, 1, {t(6)}")
e(f"v_mul_u32_u24 {t(9)}, 10, {t(9)}")
e(f"v_and_b32 {t(10)}, 1, {t(6)}")
e(f"v_sub_u32 {t(9)}, {t(9)}, {t(10)}")
e(f"v_add3_u32 {t(9)}, {t(9)}, {t(7)}, 9")
e(f"v_mul_u32_u24 {t(9)}, 48, {t(9)}")
e(f"v_add_u32 {v(vTS2)}, {t(9)}, {t(8)}")
e(f"v_and_b32 {t(6)}, 7, {v(vL)}")
e(f"v_mul_u32_u24 {t(6)}, {TS}, {t(6)}")
e(f"v_lshrrev_b32 {t(7)}, 3, {v(vL)}")
e(f"v_lshlrev_b32 {t(7)}, 3, {t(7)}")
e(f"v_add3_u32 {v(vTD)}, {t(6)}, {t(7)}, s36")
e(f"s_mov_b32 s39, s36")
e("s_waitcnt lgkmcnt(0)")
stamp('ka')
for i in range(3):
    idw = vmem(f"buffer_load_dwordx4 {v(DWS+4*i,4)}, {v(vDWG)}, {s(SDW,4)}, 0 offen offset:{16*i}")
xidx = []
for tt in range(5):
    for j in range(4):
        k = vmem(f"buffer_load_dwordx4 {v(XS+16*tt+4*j,4)}, {v(vXOFF+j)}, {s(SX,4)}, {s(sROW+tt)} offen")
        if tt == 0 and j == 0 and TOUCH:
            vmem(f"buffer_load_dword {v(vXRR)}, v2, {s(SW1,4)}, 0 offen")
            vmem(f"buffer_load_dword {v(vXRR)}, v2, {s(SW2,4)}, 0 offen")
            vmem(f"buffer_load_dword {v(vXRR)}, v3, {s(SO,4)}, s38 offen")
    xidx.append(k)
stamp('issued')
e(f"v_bfe_u32 {t(5)}, {v(vL)}, 4, 1")
e(f"v_lshrrev_b32 {t(6)}, 5, {v(vL)}")
e(f"v_and_b32 {t(2)}, 3, {v(vL)}")
e(f"v_lshrrev_b32 {t(7)}, 2, {v(vL)}")
e(f"v_and_b32 {t(8)}, 3, {t(7)}")
e(f"v_lshl_add_u32 {t(8)}, {t(5)}, 3, {t(8)}")
e(f"v_lshl_add_u32 {t(8)}, {t(6)}, 2, {t(8)}")
e(f"v_mul_u32_u24 {t(7)}, 768, {t(7)}")
e(f"v_mul_u32_u24 {t(8)}, 192, {t(8)}")
e(f"s_cmp_lt_u32 {s(sW)}, 2")
e(f"s_cselect_b64 vcc, -1, 0")
e(f"s_cselect_b64 {s(SWD,2)}, {s(SW1,2)}, {s(SW2,2)}")
e(f"s_cselect_b32 {s(sDU)}, 64, 6144")
e(f"s_cselect_b32 s37, 12288, 64")
e(f"s_movk_i32 s36, 3072")
e(f"s_cselect_b32 s36, 36864, s36")
e(f"s_mov_b32 {s(SWD+2)}, 73728")
e(f"s_mov_b32 {s(SWD+3)}, 0x00020000")
e(f"v_cndmask_b32 {t(7)}, {t(8)}, {t(7)}, vcc")
e(f"v_lshl_add_u32 {v(vWG)}, {t(2)}, 4, {t(7)}")
e(f"s_mul_i32 {s(sDO)}, s36, {s(sPAR)}")
e(f"s_add_u32 {s(sDO+1)}, {s(sDO)}, s37")
e(f"s_add_u32 {s(sDO+2)}, {s(sDO+1)}, s37")
e(f"s_mul_i32 {s(sMW)}, {s(sW)}, 3072")
dma_idx = {}
def dma(u, tt):
    return [f"s_add_u32 m0, {s(sMW)}, {CB0-CH*u+1024*tt}",
            f"s_nop 0",
            f"buffer_load_dwordx4 {v(vWG)}, {s(SWD,4)}, {s(sDO+tt)} offen lds ;@dma{u}_{tt}",
            f"s_add_u32 {s(sDO+tt)}, {s(sDO+tt)}, {s(sDU)}"]
def emit(x):
    if isinstance(x, (list, tuple)):
        for y in x: emit(y)
        return
    op = x.split()[0]
    if op.startswith('buffer_'):
        k = vmem(x)
        if ';@' in x: dma_idx[x.split(';@')[1]] = k
    else: e(x)
if EARLY == 0:
    for u in range(3):
        for tt in range(3): emit(dma(u, tt))
e(f"v_bfe_u32 {t(2)}, {v(vL)}, 3, 1")
e(f"v_bfe_u32 {t(3)}, {v(vL)}, 2, 1")
e(f"v_and_b32 {t(4)}, 3, {v(vL)}")
e(f"v_lshlrev_b32 {t(7)}, 1, {t(5)}")
e(f"v_sub_u32 {t(7)}, {t(7)}, {t(2)}")
e(f"v_lshlrev_b32 {t(8)}, 1, {t(6)}")
e(f"v_sub_u32 {t(8)}, {t(8)}, {t(3)}")
for G in range(2):
    e(f"v_add_u32 {t(9)}, {G}, {t(8)}")
    e(f"v_lshl_add_u32 {t(10)}, {t(9)}, 2, {t(4)}")
    e(f"v_lshlrev_b32 {t(10)}, 3, {t(10)}")
    e(f"v_mov_b32 {v(MUL[G])}, 0")
    e(f"v_mov_b32 {v(OFF[G])}, 448")
    e(f"v_cmp_gt_u32 vcc, 2, {t(9)}")
    e(f"v_mov_b32 {t(11)}, 64")
    nop(1)
    e(f"v_cndmask_b32 {v(MUL[G])}, {v(MUL[G])}, {t(11)}, vcc")
    e(f"v_cndmask_b32 {v(OFF[G])}, {v(OFF[G])}, {t(10)}, vcc")
    e(f"v_lshrrev_b32 {t(11)}, 4, {t(10)}")
    e(f"v_cmp_eq_u32 vcc, 5, {t(11)}")
    e(f"v_lshlrev_b32 {t(10)}, 3, {t(4)}")
    e(f"v_add_u32 {t(10)}, 440, {t(10)}")
    e(f"v_mov_b32 {t(11)}, 16")
    e(f"v_cndmask_b32 {v(OFF[G])}, {v(OFF[G])}, {t(10)}, vcc")
    e(f"v_cndmask_b32 {v(MUL[G])}, {v(MUL[G])}, {t(11)}, vcc")
e(f"v_mov_b32 {t(11)}, 448")
for sidx in range(4):
    cs = (sidx & 1) + 4*(sidx >> 1)
    e(f"v_add_u32 {t(9)}, {cs}, {t(7)}")
    e(f"v_cmp_gt_u32 vcc, 7, {t(9)}")
    for G in range(2):
        e(f"v_mad_u32_u24 {t(12+G)}, {t(9)}, {v(MUL[G])}, {v(OFF[G])}")
    for G in range(2):
        e(f"v_cndmask_b32 {t(12+G)}, {t(11)}, {t(12+G)}, vcc")
        e(f"v_add_u32 {v(vAA+2*sidx+G)}, s39, {t(12+G)}")
se = e
se(f"v_bfe_u32 {t(9)}, {v(vL)}, 1, 3")
se(f"v_min_u32 {t(9)}, 6, {t(9)}")
se(f"v_and_b32 {t(10)}, 1, {v(vL)}")
se(f"v_add_u32 {t(11)}, {t(9)}, {t(5)}")
se(f"v_mul_u32_u24 {t(11)}, 96, {t(11)}")
se(f"v_add_u32 {t(12)}, {t(10)}, {t(6)}")
se(f"v_lshl_add_u32 {t(11)}, {t(12)}, 4, {t(11)}")
se(f"s_mul_i32 s37, {s(sW)}, {24*960+48}")
se(f"s_add_u32 s37, s37, {XB}")
se(f"v_add_u32 {v(vBA)}, s37, {t(11)}")
se(f"v_and_b32 {t(2)}, 15, {v(vL)}")
se(f"v_mul_u32_u24 {t(3)}, 6, {t(6)}")
se(f"v_lshl_add_u32 {t(3)}, {t(5)}, 2, {t(3)}")
se(f"v_mul_u32_u24 {t(3)}, 14, {t(3)}")
se(f"v_add_u32 {t(3)}, {t(3)}, {t(2)}")
se(f"v_mul_u32_u24 {t(4)}, 14, {t(6)}")
se(f"v_add_u32 {t(4)}, {t(4)}, {t(9)}")
se(f"v_add_u32 {t(4)}, 168, {t(4)}")
se(f"v_mov_b32 {t(7)}, 200")
se(f"s_mul_i32 s37, {s(sW)}, 48")
se(f"s_add_u32 s37, s37, {HB}")
se(f"v_cmp_eq_u32 vcc, 0, {t(10)}")
se(f"s_nop 1")
se(f"v_cndmask_b32 {t(8)}, {t(7)}, {t(4)}, vcc")
se(f"v_add_u32 {t(4)}, 7, {t(4)}")
se(f"v_cndmask_b32 {t(4)}, {t(7)}, {t(4)}, vcc")
se(f"v_cmp_eq_u32 {s(32,2)}, 1, {t(5)}")
se(f"v_cmp_gt_u32 vcc, 14, {t(2)}")
se(f"s_nop 0")
for r in range(4):
    se(f"v_add_u32 {t(11)}, {14*r}, {t(3)}")
    if r == 2: se(f"v_cndmask_b32 {t(11)}, {t(11)}, {t(8)}, {s(32,2)}")
    if r == 3: se(f"v_cndmask_b32 {t(11)}, {t(11)}, {t(4)}, {s(32,2)}")
    se(f"v_cndmask_b32 {t(11)}, {t(7)}, {t(11)}, vcc")
    se(f"v_mul_u32_u24 {t(11)}, {HS}, {t(11)}")
    se(f"v_add_u32 {v(vHW+r)}, s37, {t(11)}")
se(f"s_lshl_b32 s37, {s(sW)}, 11")
se(f"v_add_u32 {v(vSW)}, s37, {v(vLIN)}")
se(f"v_lshlrev_b32 {t(12)}, 4, {t(6)}")
se(f"v_add_u32 {t(13)}, s38, {t(12)}")
se(f"v_and_b32 {t(2)}, 31, {v(vL)}")
def pxoff(dst, second):
    se(f"v_mul_u32_u24 {t(4)}, 4682, {t(3)}")
    se(f"v_lshrrev_b32 {t(4)}, 16, {t(4)}")
    se(f"v_mul_u32_u24 {t(7)}, 14, {t(4)}")
    se(f"v_sub_u32 {t(7)}, {t(3)}, {t(7)}")
    se(f"v_cmp_le_u32 vcc, 6, {t(4)}")
    se(f"v_and_b32 {t(8)}, 1, {t(7)}")
    se(f"v_lshl_add_u32 {t(9)}, {t(8)}, 3, {t(4)}")
    se(f"v_sub_u32 {t(7)}, {t(7)}, {t(8)}")
    se(f"v_mul_u32_u24 {t(7)}, 224, {t(7)}")
    se(f"v_add_u32 {t(7)}, {t(7)}, {t(9)}")
    se(f"v_add_u32 {t(8)}, 218, {t(7)}")
    se(f"v_cndmask_b32 {t(7)}, {t(7)}, {t(8)}, vcc")
    if second:
        se(f"v_subrev_u32 {t(4)}, 168, {t(3)}")
        se(f"v_mul_u32_u24 {t(8)}, 37, {t(4)}")
        se(f"v_lshrrev_b32 {t(8)}, 8, {t(8)}")
        se(f"v_mul_u32_u24 {t(9)}, 7, {t(8)}")
        se(f"v_sub_u32 {t(9)}, {t(4)}, {t(9)}")
        se(f"v_lshrrev_b32 {t(10)}, 1, {t(8)}")
        se(f"v_lshl_add_u32 {t(9)}, {t(9)}, 1, {t(10)}")
        se(f"v_mul_u32_u24 {t(9)}, 224, {t(9)}")
        se(f"v_and_b32 {t(8)}, 1, {t(8)}")
        se(f"v_cmp_le_u32 vcc, 168, {t(3)}")
        se(f"v_add3_u32 {t(9)}, {t(9)}, {t(8)}, 6")
        se(f"s_nop 0")
        se(f"v_cndmask_b32 {t(7)}, {t(7)}, {t(9)}, vcc")
    se(f"v_mul_u32_u24 {t(7)}, 192, {t(7)}")
    se(f"v_add_u32 {v(dst)}, {t(7)}, {t(13)}")
se(f"s_lshl_b32 s37, {s(sW)}, 5")
se(f"v_add_u32 {t(3)}, s37, {t(2)}")
se(f"v_mul_u32_u24 {t(4)}, {HS}, {t(3)}")
se(f"v_add_u32 {t(4)}, {HB}, {t(4)}")
se(f"v_add_u32 {v(vHRO)}, {t(4)}, {t(12)}")
pxoff(vGOO, False)
se(f"s_lshr_b32 s37, {s(sW)}, 1")
se(f"s_lshl_b32 s37, s37, 5")
se(f"s_add_u32 s37, s37, 128")
se(f"v_add_u32 {t(3)}, s37, {t(2)}")
se(f"v_mul_u32_u24 {t(4)}, {HS}, {t(3)}")
se(f"v_add_u32 {t(4)}, {HB}, {t(4)}")
se(f"v_add_u32 {v(vHRS)}, {t(4)}, {t(12)}")
pxoff(vGOS, True)
se(f"v_lshlrev_b32 {t(3)}, 3, {t(6)}")
se(f"v_sub_u32 {t(14)}, {t(2)}, {t(3)}")
se(f"v_and_b32 {t(3)}, 1, {t(14)}")
se(f"v_lshlrev_b32 {t(3)}, 4, {t(3)}")
se(f"v_mov_b32 {t(4)}, 0x3f80")
se(f"v_lshlrev_b32 {t(3)}, {t(3)}, {t(4)}")
se(f"v_ashrrev_i32 {t(14)}, 1, {t(14)}")
se(f"s_lshl_b32 s36, {s(sPAR)}, 3")
se(f"s_xor_b32 s37, s36, 8")
se(f"v_mov_b32 {t(4)}, 0")
for (dst, so) in ((IA, 's36'), (IB, 's37')):
    se(f"v_subrev_u32 {t(7)}, {so}, {t(14)}")
    for j in range(4):
        se(f"v_cmp_eq_u32 {s(32+2*(j&1),2)}, {j}, {t(7)}")
        if j & 1:
            nop(1)
            se(f"v_cndmask_b32 {v(dst+j-1)}, {t(4)}, {t(3)}, {s(32,2)}")
            se(f"v_cndmask_b32 {v(dst+j)}, {t(4)}, {t(3)}, {s(34,2)}")
se(f"s_lshl_b32 {s(sRA)}, {s(sPAR)}, 5")
se(f"s_xor_b32 {s(sRB)}, {s(sRA)}, 32")
se(f"v_and_b32 {t(2)}, 3, {v(vL)}")
se(f"v_bfe_u32 {t(3)}, {v(vL)}, 2, 1")
se(f"v_lshrrev_b32 {t(4)}, 4, {v(vL)}")
se(f"v_mul_u32_u24 {t(7)}, {448*192}, {t(2)}")
se(f"s_lshl_b32 s37, {s(sW)}, 6")
se(f"s_add_u32 s37, s37, s38")
se(f"s_add_u32 s37, s37, {(7*224+7)*192}")
se(f"s_cmp_lt_u32 {s(sW)}, 3")
se(f"s_cselect_b32 s37, s37, {OOB}")
se(f"v_lshl_add_u32 {t(7)}, {t(3)}, 5, {t(7)}")
se(f"v_lshl_add_u32 {t(7)}, {t(4)}, 3, {t(7)}")
se(f"v_add_u32 {t(7)}, s37, {t(7)}")
se(f"v_and_b32 {t(8)}, 8, {v(vL)}")
se(f"v_cmp_eq_u32 vcc, 0, {t(8)}")
se(f"v_mov_b32 {t(9)}, {OOB}")
se(f"s_nop 0")
se(f"v_cndmask_b32 {v(vGOR)}, {t(9)}, {t(7)}, vcc")
se(f"v_cmp_eq_u32 vcc, {t(3)}, {t(5)}")
se(f"v_mul_u32_u24 {t(7)}, {HS}, {t(2)}")
se(f"v_add_u32 {t(7)}, {HB+192*HS}, {t(7)}")
se(f"v_add_u32 {t(7)}, {t(7)}, {t(12)}")
se(f"v_mov_b32 {t(9)}, {ZB}")
se(f"v_cndmask_b32 {v(vHRR)}, {t(9)}, {t(7)}, vcc")
se(f"s_lshl_b32 s37, {s(sW)}, 8")
se(f"s_add_u32 s37, s37, {SCR}")
se(f"v_lshl_add_u32 {t(7)}, {t(2)}, 5, {t(12)}")
se(f"v_add_u32 {t(7)}, s37, {t(7)}")
se(f"v_cndmask_b32 {v(vRSR)}, {t(9)}, {t(7)}, vcc")
se(f"v_and_b32 {t(7)}, 7, {v(vL)}")
se(f"v_lshlrev_b32 {t(7)}, 2, {t(7)}")
se(f"v_lshl_add_u32 {t(7)}, {t(5)}, 1, {t(7)}")
se(f"v_add_u32 {t(7)}, {t(7)}, {t(6)}")
se(f"v_lshlrev_b32 {t(7)}, 3, {t(7)}")
se(f"v_add_u32 {v(vRSW)}, s37, {t(7)}")
se(f"v_bfe_u32 {t(7)}, {v(vL)}, 2, 2")
se(f"v_lshlrev_b32 {t(7)}, 6, {t(7)}")
se(f"v_lshl_add_u32 {t(7)}, {t(6)}, 9, {t(7)}")
se(f"v_lshl_add_u32 {t(7)}, {t(5)}, 5, {t(7)}")
se(f"v_lshl_add_u32 {t(7)}, {t(2)}, 3, {t(7)}")
for k in range(4):
    se(f"s_xor_b32 s37, {s(sW)}, {k}")
    se(f"s_mul_i32 s37, s37, {CH}")
    se(f"s_sub_u32 s37, {CB0-49152}, s37")
    se(f"v_add_u32 {v(vK+k)}, s37, {t(7)}")
    se(f"v_subrev_u32 {v(vK2+k)}, 49152, {v(vK+k)}")
se(f"s_mul_i32 s37, {s(sW)}, {EXW}")
se(f"s_add_u32 s37, s37, {EXB}")
se(f"v_add_u32 {v(vEXW)}, s37, {v(vLIN)}")
se(f"s_mov_b32 {s(sK)}, {f2u(KK):#x}");  se(f"s_mov_b32 {s(sK+1)}, {f2u(KK):#x}")
se(f"s_mov_b32 {s(sSC)}, {f2u(SC):#x}");  se(f"s_mov_b32 {s(sSC+1)}, {f2u(SC):#x}")
se(f"s_mov_b32 {s(sMASKHI)}, 0xffff0000")
vwait(idw)
stamp('dw')
e(f"s_mov_b64 exec, {s(sEX49,2)}")
for i in range(3):
    e(f"ds_write_b128 {v(vDWL)}, {v(DWS+4*i,4)} offset:{16*i}")
e(f"s_mov_b64 exec, -1")
def titems(o):
    it = [(vTS1, 480*i+16*o, 64*i, False) for i in range(7)]
    it += [(vTS2, 1920*ih+16*o, 8*57+64*ih, ih == 1) for ih in range(2)]
    return it
ORD = (1, 2, 0)
for oi, o in enumerate(ORD):
    for k, (src, so, do, m) in enumerate(titems(o)):
        e(f"ds_read_b64_tr_b16 {v(TRT+18*oi+2*k,2)}, {v(src)} offset:{so}")
stamp('tr')
for oi, o in enumerate(ORD):
    if oi <= 1: e(f"s_waitcnt lgkmcnt(15)")
    for k, (src, so, do, m) in enumerate(titems(o)):
        if m: e(f"s_mov_b64 exec, {s(sEX48,2)}")
        e(f"ds_write_b64 {v(vTD)}, {v(TRT+18*oi+2*k,2)} offset:{do}")
        if m: e(f"s_mov_b64 exec, -1")
    for cc in range(8):
        c = 8*o + cc
        for sidx in range(4):
            for G in range(2):
                e(f"ds_read_b64 {Areg(c, 4*sidx+2*G, 2)}, {v(vAA+2*sidx+G)} offset:{TS*cc}")
        if EARLY == 1 and cc in (1, 4, 7): emit(dma(oi, (cc-1)//3))
    stamp(f'o{oi+1}')
stamp('preload')
e(f"s_mov_b64 exec, {s(sEX60,2)}")
for tt in range(5):
    vwait(xidx[tt])
    stamp(f'row{tt}')
    base = XS + 16*tt
    for d in range(4):
        for hl in range(2):
            sel = s(sSELH) if hl else s(sSELL)
            p = PT + 2*hl + 4*(d & 1)
            e(f"v_perm_b32 {v(p)}, {v(base+4+d)}, {v(base+d)}, {sel}")
            e(f"v_perm_b32 {v(p+1)}, {v(base+12+d)}, {v(base+8+d)}, {sel}")
        for hl in range(2):
            ee = 2*d + hl
            p = PT + 2*hl + 4*(d & 1)
            e(f"ds_write_b64 {v(vXW)}, {v(p,2)} offset:{960*ee+48*tt}")
e(f"s_mov_b64 exec, -1")
for i in range(8): e(f"v_mov_b32 {v(ST+i)}, 0")
e("s_waitcnt lgkmcnt(0)")
e("s_barrier")
stamp('bar1')
def pk(op, d, *srcs, mod=""):
    e(f"v_pk_{op}_f32 {v(d,2)}, " + ", ".join(srcs) + mod)
def bread(c, sidx):
    return f"ds_read_b128 {v(BBUF[c%3]+4*sidx,4)}, {v(vBA)} offset:{960*c+16*(c>>3)+48*(sidx&1)+192*(sidx>>1)}"
for c in range(2):
    for sidx in range(4): e(bread(c, sidx))
CDMA = {1: (3,0), 4: (3,1), 7: (3,2), 10: (4,0), 13: (4,1), 16: (4,2)}
for c in range(24):
    e(f"s_waitcnt lgkmcnt({4 if c < 23 else 0})")
    for sidx in range(4):
        d = v(Dreg(c), 4)
        e(f"v_mfma_f32_16x16x32_bf16 {d}, {Areg(c,4*sidx,4)}, {v(BBUF[c%3]+4*sidx,4)}, {'0' if sidx == 0 else d}")
        if c + 2 < 24: e(bread(c+2, sidx))
        if sidx == 3 and c in CDMA: emit(dma(*CDMA[c]))
        if c >= 2:
            e(f"v_add_f32 {v(ST+sidx)}, {v(ST+sidx)}, {v(Dreg(c-2)+sidx)}")
stamp('conv')
for c in range(24):
    for h in range(2):
        pk("fma", ST+4+2*h, v(Dreg(c)+2*h,2), v(Dreg(c)+2*h,2), v(ST+4+2*h,2))
    if c >= 22:
        for h in range(2):
            pk("add", ST+2*h, v(ST+2*h,2), v(Dreg(c)+2*h,2))
e(f"s_mov_b32 s36, {f2u(1/96):#x}")
e(f"s_mov_b32 s37, {f2u(1e-5):#x}")
e(f"ds_write_b128 {v(vSW)}, {v(ST,4)}")
e(f"ds_write_b128 {v(vSW)}, {v(ST+4,4)} offset:1024")
vwait(dma_idx['dma3_2'], " lgkmcnt(0)")
e("s_barrier")
stamp('st')
for w in range(4):
    e(f"ds_read_b128 {v(SR+8*w,4)}, {v(vLIN)} offset:{2048*w}")
    e(f"ds_read_b128 {v(SR+8*w+4,4)}, {v(vLIN)} offset:{2048*w+1024}")
def fread(which, tau, f):
    G = tau >> 2
    goff = {0: 49152, 1: 0, 2: 0}[G]
    base = (aF1, aF2)[which] + 4*f
    vk = (vK2 if G == 2 else vK) + (tau & 3)
    return [f"ds_read_b64_tr_b16 {a(base+2*q,2)}, {v(vk)} offset:{goff+6144*which+1024*f+256*q}" for q in range(2)]
if SEQN == 0:
    SEQ = [('S',0),('O',0),('O',1),('S',2),('O',2),('O',3),('S',4),('O',4),('O',5),('S',6),('O',6),('O',7),
           ('S',8),('O',8),('S',10),('O',10),('O',9),('O',11)]
else:
    SEQ = [('S',0),('O',0),('O',1),('S',2),('O',2),('O',3),('S',4),('O',4),('O',5),('O',6),('O',7),('O',8),
           ('O',9),('O',11),('O',10),('S',10),('S',6),('S',8)]
NU = len(SEQ)
for f in range(6):
    for x in fread(0, 0, f): e(x)
mid = [dma(u, tt) for u in range(5, 9) for tt in range(3)]
emit(mid[0])
e(f"s_xor_b32 s32, {s(sW)}, 1")
e(f"s_mul_i32 s32, s32, {EXW}")
e(f"s_add_u32 s32, s32, {EXB}")
e(f"v_add_u32 {v(vEXR1)}, s32, {v(vLIN)}")
e(f"s_min_u32 s32, {s(sW)}, 2")
e(f"s_lshl_b32 s32, s32, 10")
e(f"s_add_u32 s32, s32, {EXB+6144}")
e(f"v_add_u32 {v(vEXR2)}, s32, {v(vLIN)}")
e(f"s_mul_i32 s38, {s(sPAR)}, 96")
e("s_waitcnt lgkmcnt(12)")
for k in range(0, 8, 2):
    pk("add", SR+k, v(SR+k,2), v(SR+8+k,2))
    pk("add", SR+16+k, v(SR+16+k,2), v(SR+24+k,2))
for k in range(0, 8, 2):
    pk("add", SR+k, v(SR+k,2), v(SR+16+k,2))
LA, LB, VV = SR+8, SR+12, SR+16
for r in range(4):
    e(f"v_mul_f32 {v(SR+r)}, s36, {v(SR+r)}")
for r in range(4):
    e(f"v_mul_f32 {v(VV+r)}, {v(SR+r)}, {v(SR+r)}")
for r in range(4):
    e(f"v_fma_f32 {v(VV+r)}, {v(SR+4+r)}, s36, -{v(VV+r)}")
for r in range(4):
    e(f"v_max_f32 {v(VV+r)}, 0, {v(VV+r)}")
for r in range(4):
    e(f"v_add_f32 {v(VV+r)}, s37, {v(VV+r)}")
for r in range(4):
    e(f"v_rsq_f32 {v(VV+r)}, {v(VV+r)}")
e("s_nop 0")
for r in range(4):
    e(f"v_mul_f32 {v(LA+r)}, {s(sSC)}, {v(VV+r)}")
for r in range(4):
    e(f"v_mul_f32 {v(LB+r)}, -{v(SR+r)}, {v(LA+r)}")
mi = 1
def norm(o, h):
    for c in range(8*o, 8*o+8):
        pk("fma", Dreg(c)+2*h, v(Dreg(c)+2*h,2), v(LA+2*h,2), v(LB+2*h,2))
def hcv(o, r):
    for d in range(4):
        c = 8*o + 2*d
        e(f"v_cvt_pk_bf16_f32 {v(PKD+12*r+4*o+d)}, {v(Dreg(c)+r)}, {v(Dreg(c+1)+r)}")
def hw(o, r):
    e(f"ds_write_b128 {v(vHW+r)}, {v(PKD+12*r+4*o,4)} offset:{16*o}")
steps = [(o, h) for o in range(3) for h in range(2)]
norm(0, 0)
for k, (o, h) in enumerate(steps):
    hcv(o, 2*h)
    hw(o, 2*h)
    hcv(o, 2*h+1)
    if k+1 < len(steps): norm(*steps[k+1])
    hw(o, 2*h+1)
    if k in (1, 3):
        emit(mid[mi]); mi += 1
for f in range(6):
    for x in fread(1, 0, f): e(x)
stamp('hw')
e("s_waitcnt lgkmcnt(12)")
e("s_barrier")
for ks in range(6):
    e(f"ds_read_b128 {a(aH['S']+4*ks,4)}, {v(vHRS)} offset:{32*ks}")
for ks in range(6):
    e(f"ds_read_b128 {a(aH['O']+4*ks,4)}, {v(vHRO)} offset:{32*ks}")
for ks in range(6):
    e(f"ds_read_b128 {a(aHR+4*ks,4)}, {v(vHRR)} offset:{32*ks}")
emit(mid[mi]); mi += 1
stamp('prefill')
first_g2 = {'O': True, 'S': True}
def g1(n):
    blk, tau = SEQ[n]; zb = Z[n % 3]
    out = []
    for ks in range(6):
        post = []
        if n+1 < NU and SEQ[n+1][1] != tau: post = fread(0, SEQ[n+1][1], ks)
        out.append((f"v_mfma_f32_32x32x16_bf16 {v(zb,16)}, {a(aF1+4*ks,4)}, {a(aH[blk]+4*ks,4)}, {'0' if ks == 0 else v(zb,16)}", post, 32))
    return out
def g2(n, order=None):
    blk, tau = SEQ[n]
    first = all(SEQ[k][0] != blk for k in range(n))
    out = []
    for (kk, cb) in (order or [(kk, cb) for kk in range(2) for cb in range(3)]):
        post = []
        if n+1 < NU and SEQ[n+1][1] != tau: post = fread(1, SEQ[n+1][1], 3*kk+cb)
        ac = v(ACC[blk]+16*cb, 16)
        out.append((f"v_mfma_f32_32x32x16_bf16 {ac}, {a(aF2+4*(3*kk+cb),4)}, {v(Y+4*kk,4)}, {'0' if (first and kk == 0) else ac}", post, 32))
    return out
def g1r():
    return [(f"v_mfma_f32_16x16x32_bf16 {v(ZR,4)}, {a(aF1+4*ks,4)}, {a(aHR+4*ks,4)}, {'0' if ks == 0 else v(ZR,4)}", [], 16) for ks in range(6)]
def g2r(first):
    return [(f"v_mfma_f32_16x16x32_bf16 {a(aCR+4*cb,4)}, {a(aF2+4*(3*kk+cb),4)}, {a(aBR+4*kk,4)}, {'0' if (first and kk == 0) else a(aCR+4*cb,4)}", [], 16)
            for kk in range(2) for cb in range(3)]
def fmul(zb, tb, n=8): return [f"v_pk_mul_f32 {v(tb+2*i,2)}, {v(zb+2*i,2)}, {v(tb+2*i,2)}" for i in range(n)]
def cvts(tb, yb, n=8): return [f"v_cvt_pk_bf16_f32 {v(yb+i)}, {v(tb+2*i)}, {v(tb+2*i+1)}" for i in range(n)]
def add1(tb, n=8): return [f"v_pk_fma_f32 {v(tb+2*i,2)}, {v(tb+2*i,2)}, {s(sSC,2)}, {s(sSC,2)}" for i in range(n)]
def poly(zb, tb, n=8):
    o = [f"v_pk_fma_f32 {v(tb+2*i,2)}, {v(zb+2*i,2)}, {v(zb+2*i,2)}, {s(sK,2)}" for i in range(n)]
    o += [f"v_pk_mul_f32 {v(tb+2*i,2)}, {v(zb+2*i,2)}, {v(tb+2*i,2)} neg_lo:[1,0] neg_hi:[1,0]" for i in range(n)]
    return o
def poly1(zb, tb, n=16):
    o = [f"v_fma_f32 {v(tb+i)}, {v(zb+i)}, {v(zb+i)}, {s(sK)}" for i in range(n)]
    o += [f"v_mul_f32 {v(tb+i)}, -{v(zb+i)}, {v(tb+i)}" for i in range(n)]
    return o
def rcps(tb, n=16): return [f"v_rcp_f32 {v(tb+i)}, {v(tb+i)}" for i in range(n)]
def exps(tb, n=16): return [f"v_exp_f32 {v(tb+i)}, {v(tb+i)}" for i in range(n)]
def cost(x):
    if isinstance(x, (list, tuple)): return sum(cost(y) for y in x)
    op = x.split()[0]
    if op in ('v_rcp_f32', 'v_exp_f32'): return 8
    if op.startswith('ds_write'): return 12
    if op.startswith('buffer'): return 8
    return 4
def mphase(mf, fill, mem=()):
    mem = list(mem)
    nm = len(mf)
    slots = {}
    if mem:
        cand = [k for k in range(nm) if not mf[k][1]] or list(range(nm))
        if len(cand) < len(mem): cand = list(range(nm))
        for i, it in enumerate(mem):
            k = cand[min(len(cand)-1, int((i+0.5)*len(cand)/len(mem)))]
            slots.setdefault(k, []).append(it)
    total = sum(cost(x) for x in fill)
    fixed = [8 + cost(m[1]) + cost(slots.get(k, [])) for k, m in enumerate(mf)]
    tot_time = max(sum(m[2] for m in mf), total + sum(fixed))
    scale = tot_time / sum(m[2] for m in mf)
    fi = 0; used = 0; acc = 0
    for k, (m, post, cyc) in enumerate(mf):
        e(m)
        for x in post: e(x)
        for it in slots.get(k, []): emit(it)
        acc += cyc*scale - fixed[k]
        while fi < len(fill) and (used + cost(fill[fi])/2 <= acc or k == nm-1):
            emit(fill[fi])
            used += cost(fill[fi]); fi += 1

def check_order(lo, hi):
    ins = [Ins(x) for x in L[lo:hi]]
    for i, c in enumerate(ins):
        if c.kind == 'mfma':
            for j in range(i+1, len(ins)):
                if ins[j].kind == 'valu' and set(ins[j].w) & (set(c.b)):
                    raise Exception("order problem: " + c.text + " / " + ins[j].text)

e("s_waitcnt lgkmcnt(12)")
for (m, post, _) in g1(0): e(m)
e("s_waitcnt lgkmcnt(6)")
f1 = g1(1)
mfA = [(m, [], c) for (m, post, c) in f1]
mfB = [(m, f1[k][1], c) for k, (m, post, c) in enumerate(g1r())]
e(mfA[0][0]); e(mfA[1][0])
p1 = poly1(Z[0], TT[0])
mphase(mfA[2:], p1[:24], [mid[mi]]); mi += 1
e("s_waitcnt lgkmcnt(0)")
mphase(mfB, p1[24:] + exps(TT[0])[:4])
for x in exps(TT[0])[4:]: e(x)
for x in poly(ZR, TR_, 2): e(x)
for x in exps(TR_, 4): e(x)
stamp('fill')

if SEQN == 0:
    R_G1 = {4, 10}; BARS = {3: 'dma7_2', 9: 'dma11_2'}
else:
    R_G1 = {4, 12}; BARS = {3: 'dma7_2', 8: 'dma11_2'}
R_POLY = {m+1 for m in R_G1}; R_EXP = R_POLY
R_ADD = {0} | {m+2 for m in R_G1}; R_RCP = R_ADD
R_FIN = {1} | {m+3 for m in R_G1}
R_G2 = {2: True}; R_G2.update({m+4: False for m in R_G1})
late = [dma(u, tt) for u in range(9, 12) for tt in range(3)]
resid = [f"buffer_load_dwordx4 {a(aXO+4*i,4)}, {v(vGOO)}, {s(SX,4)}, {s(sRB) if i & 1 else s(sRA)} offen offset:{64*(i>>1)}" for i in range(6)]
resid += [f"buffer_load_dwordx4 {a(aXS+4*i,4)}, {v(vGOS)}, {s(SX,4)}, {s(sRA)} offen offset:{64*i}" for i in range(3)]
resid += [f"buffer_load_dwordx2 {v(vXRR,2)}, {v(vGOR)}, {s(SX,4)}, 0 offen ;@resid"]
assert mi == 5
MEM = {0: mid[5:7], 1: mid[7:9], 2: mid[9:11], 3: [mid[11]] + late[0:2], 4: late[2:4], 5: late[4:7], 6: late[7:9],
       7: resid[0:2], 8: resid[2:4], 9: resid[4:6], 10: resid[6:8], 11: resid[8:10]}
identO = [(f"v_mfma_f32_32x32x16_bf16 {v(ACC['O']+16*cb,16)}, {v(IB if h else IA,4)}, {a(aXO+8*cb+4*h,4)}, {v(ACC['O']+16*cb,16)}", [], 32) for cb in range(3) for h in range(2)]
identS = [(f"v_mfma_f32_32x32x16_bf16 {v(ACC['S']+16*cb,16)}, {v(IA,4)}, {a(aXS+4*cb,4)}, {v(ACC['S']+16*cb,16)}", [], 32) for cb in range(3)]
IDENT = {12: identO[0:2], 13: identO[2:4], 14: identO[4:6], 15: identS}
IDWAIT = {12: 6, 13: 0}
RECV = 48; RREC = 96; SP = 80
lastO = max(n for n in range(NU) if SEQ[n][0] == 'O')
lastS = max(n for n in range(NU) if SEQ[n][0] == 'S')
def epi(base, g, vgo, soff, dst=None):
    dst = base + 4*g if dst is None else dst
    return (cvts(base+8*g, dst, 4) + ["s_nop 1"] +
            [f"v_permlane32_swap_b32 {v(dst)}, {v(dst+2)}", f"v_permlane32_swap_b32 {v(dst+1)}, {v(dst+3)}"],
            f"buffer_store_dwordx4 {v(dst,4)}, {v(vgo)}, {s(SO,4)}, {soff} offen offset:{32*g}")
def sends(par):
    return [f"ds_write_b128 {v(vEXW)}, {v(ACC['S']+24*(1-par)+4*i,4)} offset:{1024*i}" for i in range(6)]
sendR = [f"ds_write_b128 {v(vEXW)}, {a(aCR+4*i,4)} offset:{6144+1024*i}" for i in range(3)]
recv = [f"ds_read_b128 {v(RECV+4*i,4)}, {v(vEXR1)} offset:{1024*i}" for i in range(6)]
recvR = [f"ds_read_b128 {v(RREC+4*i,4)}, {v(vEXR2)} offset:{EXW*i}" for i in range(4)]
def final_adds():
    e(f"s_cmp_eq_u32 {s(sPAR)}, 1")
    e(f"s_cbranch_scc1 L_add1")
    for i in range(12): pk("add", RECV+2*i, v(RECV+2*i,2), v(ACC['S']+2*i,2))
    e(f"s_branch L_add2")
    lab("L_add1")
    for i in range(12): pk("add", RECV+2*i, v(RECV+2*i,2), v(ACC['S']+24+2*i,2))
    lab("L_add2")
def final_R():
    for h in range(2):
        pk("add", RREC+2*h, v(RREC+2*h,2), v(RREC+4+2*h,2))
        pk("add", RREC+8+2*h, v(RREC+8+2*h,2), v(RREC+12+2*h,2))
        e(f"v_lshlrev_b32 {v(RREC+4+2*h)}, 16, {v(vXRR+h)}")
        e(f"v_and_b32 {v(RREC+5+2*h)}, {s(sMASKHI)}, {v(vXRR+h)}")
    for h in range(2):
        pk("add", RREC+2*h, v(RREC+2*h,2), v(RREC+8+2*h,2))
    for h in range(2):
        pk("add", RREC+2*h, v(RREC+2*h,2), v(RREC+4+2*h,2))
for m in range(0, NU+1):
    P = []
    if m-1 >= 0: P += fmul(Z[(m-1) % 3], TT[(m-1) % 3])
    if m < NU: P += add1(TT[m % 3])
    if m+1 < NU: P += poly(Z[(m+1) % 3], TT[(m+1) % 3])
    if m in R_POLY: P += poly(ZR, TR_, 2)
    if m in R_ADD: P += add1(TR_, 2)
    if m in R_FIN: P += fmul(ZR, TR_, 2)
    cv = cvts(TT[(m-1) % 3], Y) if m-1 >= 0 else []
    if m in R_FIN: cv = cv + cvts(TR_, 2, 2)
    has_g1 = m+2 < NU
    if not (CVT_IN_M and has_g1):
        P += cv; cv = []
    for x in P: e(x)
    if m in BARS:
        vwait(dma_idx[BARS[m]])
        e("s_barrier")
    if SEQN == 0 and m == 17:
        e("s_waitcnt lgkmcnt(0)")
        e("s_barrier")
    if SEQN == 0 and m == 18:
        e("s_waitcnt lgkmcnt(0)")
        final_adds(); final_R()
    mf = []
    if m in R_G1: mf += g1r()
    if has_g1: mf += g1(m+2)
    mf += IDENT.get(m, [])
    if m in R_G2: mf += g2r(R_G2[m])
    if m-1 >= 0 and not (SEQN == 1 and m == 18): mf += g2(m-1)
    tr = []
    if m < NU: tr += rcps(TT[m % 3])
    if m in R_RCP: tr += rcps(TR_, 4)
    if m+1 < NU: tr += exps(TT[(m+1) % 3])
    if m in R_EXP: tr += exps(TR_, 4)
    fill = []
    k = 0
    for x in cv:
        fill.append(x)
        fill += tr[k:k+1]; k += 1
    if m in R_FIN:
        fill += [[f"s_mov_b64 exec, {s(sEXR,2)}", "s_nop 0", f"ds_write_b64 {v(vRSW)}, v[2:3]", "s_mov_b64 exec, -1",
                 f"ds_read_b128 {a(aBR,4)}, {v(vRSR)}", f"ds_read_b128 {a(aBR+4,4)}, {v(vRSR)} offset:128"]]
    rest = tr[k:]
    mem = list(MEM.get(m, []))
    if SEQN == 0:
        if m == 17: mem += recv + recvR
        if m == 18:
            for g in range(3):
                vv, st = epi(RECV, g, vGOS, 's38', SP+4*g)
                rest += vv + [st]
                rest += [f"v_cvt_pk_bf16_f32 {v(2+g)}, {v(RREC+2*g)}, {v(RREC+2*g+1)}" if g < 2 else f"buffer_store_dwordx2 v[2:3], {v(vGOR)}, {s(SO,4)}, 0 offen"]
    else:
        if m in (16, 17):
            gs = range(0, 3) if m == 16 else range(3, 6)
            nr = []
            step = len(rest)//3
            for i, g in enumerate(gs):
                vv, st = epi(ACC['O'], g, vGOO, '0')
                nr += rest[i*step:(i+1)*step if i < 2 else len(rest)][:0]
                nr += vv + [["s_nop 1", st]] + rest[i*step:((i+1)*step if i < 2 else len(rest))]
            rest = nr
        if m == 17: mem += sendR
    wl = ""
    if m in IDWAIT:
        e(f"s_waitcnt vmcnt({IDWAIT[m]}) lgkmcnt(0)")
    elif not (SEQN == 0 and m in (17, 18)): e("s_waitcnt lgkmcnt(0)")
    L.append(f"    ; ---- M{m}")
    lo = len(L)
    if SEQN == 0 and m == 16:
        e(f"s_cmp_eq_u32 {s(sPAR)}, 1")
        e(f"s_cbranch_scc1 L_m16b")
        for par in range(2):
            if par == 1: lab("L_m16b")
            mphase(mf, fill + rest, sends(par) + sendR)
            if par == 0: e("s_branch L_m16e")
        lab("L_m16e")
    elif SEQN == 1 and m == 18:
        e(f"s_cmp_eq_u32 {s(sPAR)}, 1")
        e(f"s_cbranch_scc1 L_m18b")
        for par in range(2):
            if par == 1: lab("L_m18b")
            cbs = (2, 1, 0) if par == 0 else (0, 1, 2)
            mm = g2(17, [(kk, cb) for cb in cbs for kk in range(2)])
            sn = sends(par)
            first4 = sn[2:6] if par == 0 else sn[0:4]
            last2 = sn[0:2] if par == 0 else sn[4:6]
            for k in range(4): e(mm[k][0])
            e(mm[4][0])
            for x in first4[:2]: e(x)
            e(mm[5][0])
            for x in first4[2:]: e(x)
            for x in last2: e(x)
            if par == 0: e("s_branch L_m18e")
        lab("L_m18e")
    else:
        mphase(mf, fill + rest, mem)
    check_order(lo, len(L))
    stamp(f"m{m}")
if SEQN == 0:
    nop(4)
    pend = None
    for g in range(6):
        vv, st = epi(ACC['O'], g, vGOO, '0')
        for x in vv[:4]: e(x)
        if pend:
            for x in pend[0][5:]: e(x)
            emit(pend[1])
        pend = (vv, st)
    for x in pend[0][4:]: e(x)
    emit(pend[1])
else:
    e("s_waitcnt lgkmcnt(0)")
    e("s_barrier")
    for x in recv + recvR: e(x)
    e("s_waitcnt lgkmcnt(4)")
    stamp('exch')
    final_adds()
    pend = None
    for g in range(3):
        vv, st = epi(RECV, g, vGOS, 's38', SP+4*g)
        for x in vv[:4]: e(x)
        if pend:
            for x in pend[0][5:]: e(x)
            emit(pend[1])
        pend = (vv, st)
    for x in pend[0][4:]: e(x)
    emit(pend[1])
    e("s_waitcnt lgkmcnt(0)")
    final_R()
    for g in range(2): e(f"v_cvt_pk_bf16_f32 {v(2+g)}, {v(RREC+2*g)}, {v(RREC+2*g+1)}")
    emit(f"buffer_store_dwordx2 v[2:3], {v(vGOR)}, {s(SO,4)}, 0 offen")
if DEBUG_STAMPS:
    e("s_waitcnt vmcnt(0)")
    stamp('end')
    e("s_memrealtime s[38:39]")
    e("s_waitcnt lgkmcnt(0)")
    e(f"s_cmp_lg_u32 {s(sW)}, 0")
    e(f"s_cbranch_scc1 L_end")
    e(f"s_mov_b64 exec, 1")
    e(f"v_mov_b32 v3, 0")
    if 'span' in ARGS:
        e(f"s_not_b32 s36, s100")
        e(f"v_mov_b32 v2, s36")
        e(f"v_mov_b32 v4, s38")
        e(f"buffer_atomic_umax v2, v3, {s(SDBG,4)}, 0 offen offset:56")
        e(f"buffer_atomic_umax v4, v3, {s(SDBG,4)}, 0 offen offset:60")
        e(f"v_mov_b32 v5, s100")
        e(f"buffer_atomic_umax v5, v3, {s(SDBG,4)}, 0 offen offset:52")
        e("s_waitcnt vmcnt(0)")
    e(f"s_cmp_lg_u32 s2, 100")
    e(f"s_cbranch_scc1 L_end")
    e(f"s_sub_u32 s36, s38, s100")
    e(f"v_mov_b32 v2, s36")
    e(f"buffer_store_dword v2, v3, {s(SDBG,4)}, 0 offen offset:48")
    for i in range(1, nstamp[0]):
        e(f"s_sub_u32 s36, {s(sSTAMP+2*i)}, {s(sSTAMP)}")
        e(f"v_mov_b32 v2, s36")
        e(f"buffer_store_dword v2, v3, {s(SDBG,4)}, 0 offen offset:{4*(i-1)}")
    e("s_waitcnt vmcnt(0)")

probs = sum((check_hazards(pp, "all") for pp in paths(L)), [])
seen = set()
for p in probs:
    if p not in seen: print(p); seen.add(p)
open(OUTF, 'w').write(header() + "\n".join(L) + "\n" + footer())
print("lines", len(L), "stamps", nstamp[0], "vmem", vm[0])
```
